```python
import torch

def _softmax(x, axis=-1):
    return torch.softmax(x, dim=axis)
def _gelu(x):
    return torch.nn.functional.gelu(x, approximate="tanh")
def _silu(x):
    return torch.nn.functional.silu(x)
def _sigmoid(x):
    return torch.sigmoid(x)
def _layernorm(x, axis=-1, eps=1e-5):
    m = x.mean(dim=axis, keepdim=True)
    v = x.var(dim=axis, keepdim=True, unbiased=False)
    return (x - m) / torch.sqrt(v + eps)
def _scatter_add(tgt, idx, src, axis=0):
    return tgt.clone().index_add_(axis, idx, src)
def _segment_sum(src, seg, n):
    out = torch.zeros((n,) + src.shape[1:], dtype=src.dtype)
    return out.index_add_(0, seg, src)
def _pad(x, pw):
    flat = tuple(v for pair in reversed(pw) for v in pair)
    return torch.nn.functional.pad(x, flat)

kernel_name = 'concat_heads__mha_block_cached__mha_block_cached__near_ridge'

def setup_inputs():

    _w = (lambda a: (lambda t: t.to(torch.bfloat16) if t.is_floating_point() else t)(torch.as_tensor(a)))
    def _A_setup():
        B, Sq, D = 8, 144, 640
        H, Sk, Dh = 32, 512, 192
        return {
            "x": _w((lambda *s: torch.randn(*s, dtype=torch.bfloat16) * 0.8)(B, Sq, D)),
            "k_cache": _w((lambda *s: torch.randn(*s, dtype=torch.bfloat16) * 0.8)(B, H, Sk, Dh)),
            "v_cache": _w((lambda *s: torch.randn(*s, dtype=torch.bfloat16) * 0.05)(B, H, Sk, Dh)),
            "wq": _w((lambda *s: torch.randn(*s, dtype=torch.bfloat16) * 0.8)(D, H * Dh) * (D ** -0.5)),
            "wo": _w((lambda *s: torch.randn(*s, dtype=torch.bfloat16) * 0.05)(H * Dh, D) * ((H * Dh) ** -0.5)),
        }
    _A_in = _A_setup()

    def _B_setup():
        B, Sq, D = 8, 144, 640
        H, Sk, Dh = 32, 512, 192
        return {
            "x": _w((lambda *s: torch.randn(*s, dtype=torch.bfloat16) * 0.8)(B, Sq, D)),
            "k_cache": _w((lambda *s: torch.randn(*s, dtype=torch.bfloat16) * 0.8)(B, H, Sk, Dh)),
            "v_cache": _w((lambda *s: torch.randn(*s, dtype=torch.bfloat16) * 0.05)(B, H, Sk, Dh)),
            "wq": _w((lambda *s: torch.randn(*s, dtype=torch.bfloat16) * 0.8)(D, H * Dh) * (D ** -0.5)),
            "wo": _w((lambda *s: torch.randn(*s, dtype=torch.bfloat16) * 0.05)(H * Dh, D) * ((H * Dh) ** -0.5)),
        }
    _B_in = _B_setup()

    return {
        "A_x": _A_in["x"],
        "A_k_cache": _A_in["k_cache"],
        "A_v_cache": _A_in["v_cache"],
        "A_wq": _A_in["wq"],
        "A_wo": _A_in["wo"],
        "B_x": _B_in["x"],
        "B_k_cache": _B_in["k_cache"],
        "B_v_cache": _B_in["v_cache"],
        "B_wq": _B_in["wq"],
        "B_wo": _B_in["wo"],
    }

def reference(A_x, A_k_cache, A_v_cache, A_wq, A_wo, B_x, B_k_cache, B_v_cache, B_wq, B_wo):
    def _A_ref(x, k_cache, v_cache, wq, wo):
        B, Sq, D = x.shape
        H, Dh = 32, 192
        q = (lambda x, *d: x.permute(*d))((x @ wq).reshape(B, Sq, H, Dh), 0, 2, 1, 3)
        scores = torch.einsum("bhqd,bhkd->bhqk", q, k_cache) * (Dh ** -0.5)
        p = _softmax(scores, axis=-1)
        o = torch.einsum("bhqk,bhkd->bhqd", p, v_cache)
        return (lambda x, *d: x.permute(*d))(o, 0, 2, 1, 3).reshape(B, Sq, H * Dh) @ wo

    def _B_ref(x, k_cache, v_cache, wq, wo):
        B, Sq, D = x.shape
        H, Dh = 32, 192
        q = (lambda x, *d: x.permute(*d))((x @ wq).reshape(B, Sq, H, Dh), 0, 2, 1, 3)
        scores = torch.einsum("bhqd,bhkd->bhqk", q, k_cache) * (Dh ** -0.5)
        p = _softmax(scores, axis=-1)
        o = torch.einsum("bhqk,bhkd->bhqd", p, v_cache)
        return (lambda x, *d: x.permute(*d))(o, 0, 2, 1, 3).reshape(B, Sq, H * Dh) @ wo

    a = _A_ref(A_x, A_k_cache, A_v_cache, A_wq, A_wo)
    b = _B_ref(B_x, B_k_cache, B_v_cache, B_wq, B_wo)
    return torch.concatenate([a, b], axis=-1)
```

```python
import re


def v(n, w=1):
    return f"v{n}" if w == 1 else f"v[{n}:{n + w - 1}]"


def s(n, w=1):
    return f"s{n}" if w == 1 else f"s[{n}:{n + w - 1}]"


_REG = re.compile(r"^-?(?:abs\()?([vsa])(?:(\d+)|\[(\d+):(\d+)\])\)?$")


def regs_of(tok):
    tok = tok.strip()
    if tok == "vcc":
        return {("s", 106), ("s", 107)}
    if tok == "m0":
        return {("s", 124)}
    if tok == "exec":
        return {("s", 126), ("s", 127)}
    m = _REG.match(tok)
    if not m:
        return set()
    f = m.group(1)
    if m.group(2) is not None:
        return {(f, int(m.group(2)))}
    return {(f, i) for i in range(int(m.group(3)), int(m.group(4)) + 1)}


TRANS = ("v_exp_f32", "v_log_f32", "v_rcp_f32", "v_rsq_f32", "v_sqrt_f32", "v_sin_f32", "v_cos_f32")


class Inst:
    __slots__ = ("text", "op", "kind", "defs", "uses", "passes", "srcc", "srcab", "target", "nops", "dsdst")

    def __init__(self, text):
        self.text = text
        body = text.split(";")[0].strip()
        parts = body.split(None, 1)
        self.op = op = parts[0]
        rest = parts[1] if len(parts) > 1 else ""
        ops, cur, depth = [], "", 0
        for ch in rest:
            if ch in "[(":
                depth += 1
            if ch in "])":
                depth -= 1
            if ch == "," and depth == 0:
                ops.append(cur.strip())
                cur = ""
            else:
                cur += ch
        if cur.strip():
            ops.append(cur.strip())
        mods = []
        if ops:
            sp = ops[-1].split()
            ops[-1] = sp[0]
            mods = sp[1:]
        self.defs, self.uses = set(), set()
        self.passes = 0
        self.srcc, self.srcab = set(), set()
        self.target = None
        self.nops = 1
        self.dsdst = None
        R = [regs_of(o) for o in ops]
        if op.startswith("v_mfma"):
            self.kind = "mfma"
            self.passes = 8 if "32x32x16" in op else 4
            self.defs = R[0]
            self.srcab = R[1] | R[2]
            self.srcc = R[3]
            self.uses = self.srcab | self.srcc
        elif op.startswith("ds_read"):
            self.kind = "ds"
            self.defs = R[0]
            self.dsdst = R[0]
            self.uses = R[1]
        elif op.startswith("ds_"):
            self.kind = "ds"
            for r in R:
                self.uses |= r
            if op in ("ds_bpermute_b32", "ds_permute_b32", "ds_swizzle_b32"):
                self.defs = R[0]
                self.dsdst = R[0]
                self.uses = set().union(*R[1:])
        elif op.startswith("buffer_") or op.startswith("global_"):
            self.kind = "vmem"
            if op in ("buffer_wbl2", "buffer_inv"):
                pass
            elif "lds" in mods or op.startswith("global_load_lds"):
                for r in R:
                    self.uses |= r
                self.uses |= {("s", 124)}
                self.kind = "dma"
            elif "_load" in op:
                self.defs = R[0]
                self.uses = set().union(*R[1:])
            elif "atomic" in op:
                for r in R:
                    self.uses |= r
                if "sc0" in mods:
                    self.defs = R[0]
            else:
                for r in R:
                    self.uses |= r
                if "x4" in op or "x3" in op:
                    self.kind = "wstore"
                    self.srcc = R[0] if op.startswith("buffer") else R[1]
        elif op.startswith("v_"):
            self.kind = "trans" if op in TRANS else "valu"
            if op.startswith("v_cmp"):
                self.defs = R[0]
                self.uses = set().union(*R[1:])
            elif op.startswith("v_permlane") and "swap" in op:
                self.kind = "perm"
                self.defs = R[0] | R[1]
                self.uses = R[0] | R[1]
            elif op.startswith("v_readfirstlane") or op.startswith("v_readlane"):
                self.kind = "rdlane"
                self.defs = R[0]
                self.uses = set().union(*R[1:])
            elif op in ("v_add_co_u32", "v_sub_co_u32", "v_addc_co_u32"):
                self.defs = R[0] | R[1]
                self.uses = set().union(*R[2:])
            else:
                self.defs = R[0]
                self.uses = set().union(*R[1:]) if len(R) > 1 else set()
                if op.startswith("v_fmac") or op.startswith("v_dot2c"):
                    self.uses |= R[0]
                if op == "v_cndmask_b32" and len(ops) == 3:
                    self.uses |= regs_of("vcc")
                if "dpp" in op:
                    self.kind = "dpp"
            if op.startswith("v_dot"):
                self.kind = "dot"
        elif op == "s_nop":
            self.kind = "nop"
            self.nops = int(ops[0], 0) + 1
        elif op == "s_waitcnt":
            self.kind = "wait"
        elif op in ("s_branch",) or op.startswith("s_cbranch"):
            self.kind = "branch"
            self.target = ops[0]
        elif op.startswith("s_load") or op.startswith("s_memtime") or op.startswith("s_memrealtime"):
            self.kind = "smem"
            self.defs = R[0]
            self.uses = set().union(*R[1:]) if len(R) > 1 else set()
        elif op.startswith("s_"):
            self.kind = "salu"
            if op.startswith("s_cmp") or op in ("s_barrier", "s_endpgm", "s_sleep", "s_setprio"):
                for r in R:
                    self.uses |= r
            else:
                if R:
                    self.defs = R[0]
                    self.uses = set().union(*R[1:]) if len(R) > 1 else set()
                if op in ("s_addk_i32", "s_mulk_i32"):
                    self.uses |= R[0]
                if "saveexec" in op:
                    self.defs |= regs_of("exec")
        else:
            raise ValueError("unknown instruction: " + text)


VALU_KINDS = ("valu", "trans", "perm", "rdlane", "dpp", "dot")


def need_wait(p, c):
    n = 0
    pv = p.kind in VALU_KINDS
    cv = c.kind in VALU_KINDS
    vdefs = {r for r in p.defs if r[0] in "va"}
    sdefs = {r for r in p.defs if r[0] == "s"}
    if pv:
        if c.kind == "mfma" and vdefs & c.uses:
            n = max(n, 3 if p.kind == "dot" else 2)
        if c.kind == "perm" and vdefs & c.uses:
            n = max(n, 2)
        if c.kind == "dpp" and vdefs & c.uses:
            n = max(n, 2)
        if c.kind == "rdlane" and vdefs & c.uses:
            n = max(n, 1)
        if p.kind == "trans" and cv and c.kind != "trans" and vdefs & (c.uses | c.defs):
            n = max(n, 1)
        if p.kind == "trans" and c.kind in ("ds", "vmem", "wstore", "dma") and vdefs & c.uses:
            n = max(n, 1)
        if p.kind == "dot" and c.op != p.op and vdefs & (c.uses | c.defs):
            n = max(n, 3)
        if p.kind == "dot" and c.op == p.op and vdefs & c.uses:
            pass
        if sdefs:
            if cv and sdefs & c.uses:
                n = max(n, 4 if c.kind == "rdlane" else 2)
            if c.kind in ("vmem", "wstore", "dma") and sdefs & c.uses:
                n = max(n, 5)
            if c.kind in ("salu", "branch", "smem") and sdefs & c.uses:
                n = max(n, 1)
            if sdefs & regs_of("exec") and c.kind == "mfma":
                n = max(n, 4)
    if p.kind == "mfma":
        big = p.passes == 8
        if c.kind == "mfma":
            if vdefs & c.srcab:
                n = max(n, 12 if big else 8)
            if vdefs & c.srcc:
                if not (c.srcc == p.defs and c.passes == p.passes):
                    n = max(n, 10 if big else 6)
            elif vdefs & c.defs:
                n = max(n, 12 if big else 8)
        elif cv or c.kind in ("ds", "vmem", "wstore", "dma"):
            if vdefs & (c.uses | c.defs):
                n = max(n, 12 if big else 8)
            if cv and p.srcc & c.defs:
                n = max(n, 7 if big else 3)
            if c.kind == "ds" and p.srcc & c.defs:
                n = max(n, 7 if big else 3)
    if p.kind == "wstore":
        if p.srcc & c.defs:
            n = max(n, 2)
    if p.kind == "salu" and ("s", 124) in p.defs and c.kind == "dma":
        n = max(n, 1)
    if p.kind == "salu" and p.defs & regs_of("exec") and False:
        pass
    return n


class Asm:
    def __init__(self):
        self.items = []
        self.uid = 0

    def __call__(self, text):
        for line in text.strip().split("\n"):
            line = line.strip()
            if not line:
                continue
            if line.startswith(";"):
                self.items.append(("raw", "    " + line))
            elif line.endswith(":"):
                self.items.append(("label", line[:-1]))
            elif line.startswith("."):
                self.items.append(("raw", line))
            else:
                self.items.append(Inst(line))

    def label(self, name):
        self.items.append(("label", name))

    def raw(self, text):
        self.items.append(("raw", text))

    def newlabel(self, base):
        self.uid += 1
        return f"{base}_{self.uid}"

    def insert_lgkm_waits(self):
        out = []
        fifo = []

        def need(regs):
            idx = -1
            for i, d in enumerate(fifo):
                if d is not None and d[1] & regs:
                    idx = i
            return idx

        for it in self.items:
            if not isinstance(it, Inst):
                if it[0] == "label" and not it[1].startswith(("K_", "KS_")):
                    pend = [d for d in fifo if d is not None]
                    if pend:
                        raise RuntimeError(f"outstanding lgkm reads at label {it[1]}: {pend}")
                    fifo = []
                out.append(it)
                continue
            if it.kind == "wait":
                m = re.search(r"lgkmcnt\((\d+)\)", it.text)
                if m:
                    n = int(m.group(1))
                    if any(d is not None and d[0] == "smem" for d in fifo):
                        if n == 0:
                            fifo = []
                    else:
                        fifo = fifo[len(fifo) - n:] if n else []
                out.append(it)
                continue
            regs = it.uses | it.defs
            idx = need(regs)
            if idx >= 0:
                if any(d is not None and d[0] == "smem" for d in fifo):
                    n = 0
                else:
                    n = min(len(fifo) - 1 - idx, 15)
                out.append(Inst(f"s_waitcnt lgkmcnt({n})"))
                fifo = fifo[len(fifo) - n:] if n else []
            if it.kind == "branch" and not it.target.startswith(("R_", "KS_")):
                pend = [d for d in fifo if d is not None]
                if pend:
                    raise RuntimeError(f"outstanding lgkm reads at branch {it.text}: {pend}")
            if it.kind == "ds":
                fifo.append(("ds", it.dsdst) if it.dsdst else None)
            elif it.kind == "smem":
                fifo.append(("smem", it.defs))
            out.append(it)
        self.items = out

    def insert_nops(self):
        out = []
        window = []

        def required(c, win):
            req = 0
            dist = 0
            for p in reversed(win):
                n = need_wait(p, c)
                if n > dist:
                    req = max(req, n - dist)
                dist += p.nops
                if dist > 20:
                    break
            return req

        for it in self.items:
            if not isinstance(it, Inst):
                out.append(it)
                continue
            r = required(it, window)
            while r > 0:
                k = min(r, 16)
                nop = Inst(f"s_nop {k - 1}")
                out.append(nop)
                window.append(nop)
                r -= k
            out.append(it)
            window.append(it)
            if it.op in ("s_branch", "s_endpgm"):
                window = []
            window = window[-24:]
        self.items = out
        labels = {}
        for i, it in enumerate(self.items):
            if not isinstance(it, Inst) and it[0] == "label":
                labels[it[1]] = i
        for i, it in enumerate(self.items):
            if isinstance(it, Inst) and it.kind == "branch":
                tail = []
                for x in reversed(self.items[: i + 1]):
                    if isinstance(x, Inst):
                        if x is not it and x.op in ("s_branch", "s_endpgm"):
                            break
                        tail.append(x)
                        if len(tail) >= 24:
                            break
                tail.reverse()
                win = list(tail)
                cnt = 0
                for x in self.items[labels[it.target]:]:
                    if isinstance(x, Inst):
                        r = required(x, win)
                        if r > 0:
                            raise RuntimeError(
                                f"hazard across branch '{it.text}' -> '{x.text}' needs {r} more wait states")
                        win.append(x)
                        cnt += x.nops
                        if cnt > 20 or x.op in ("s_branch", "s_endpgm"):
                            break

    def text(self):
        lines = []
        for it in self.items:
            if isinstance(it, Inst):
                lines.append("    " + it.text)
            elif it[0] == "label":
                lines.append(it[1] + ":")
            else:
                lines.append(it[1])
        return "\n".join(lines) + "\n"


def interleave(main, fill, lead=0):
    out = list(fill[:lead])
    rest = fill[lead:]
    n = len(main)
    k = 0
    for i, m in enumerate(main):
        out.append(m)
        upto = (len(rest) * (i + 1)) // n
        out.extend(rest[k:upto])
        k = upto
    out.extend(rest[k:])
    return out
```

```python
import numpy as np


class LC:
    def __init__(self, a, nthreads=512):
        self.a = a
        self.val = {}
        tid = np.arange(nthreads, dtype=np.int64).reshape(-1, 64)
        self.val["v0"] = tid
        self.shape = tid.shape

    def get(self, x):
        if isinstance(x, int):
            return np.full(self.shape, x, dtype=np.int64)
        return self.val[x]

    def fmt(self, x):
        return str(x) if isinstance(x, int) and -16 <= x <= 64 else (hex(x & 0xFFFFFFFF) if isinstance(x, int) else x)

    def set_s(self, name, arr):
        self.val[name] = np.broadcast_to(np.asarray(arr, dtype=np.int64).reshape(-1, 1), self.shape).copy()

    def _op2(self, op, d, x, y, fn):
        assert isinstance(y, str) and y.startswith("v"), (op, d, x, y)
        self.a(f"{op} {d}, {self.fmt(x)}, {y}")
        self.val[d] = fn(self.get(x), self.get(y)) & 0xFFFFFFFF

    def and_(self, d, x, y): self._op2("v_and_b32", d, x, y, lambda p, q: p & q)
    def or_(self, d, x, y): self._op2("v_or_b32", d, x, y, lambda p, q: p | q)
    def xor(self, d, x, y): self._op2("v_xor_b32", d, x, y, lambda p, q: p ^ q)
    def add(self, d, x, y): self._op2("v_add_u32", d, x, y, lambda p, q: p + q)
    def sub(self, d, x, y): self._op2("v_sub_u32", d, x, y, lambda p, q: p - q)
    def shl(self, d, n, y): self._op2("v_lshlrev_b32", d, n, y, lambda p, q: q << p)
    def shr(self, d, n, y): self._op2("v_lshrrev_b32", d, n, y, lambda p, q: q >> p)
    def mul24(self, d, x, y): self._op2("v_mul_u32_u24", d, x, y, lambda p, q: p * q)

    def mov(self, d, x):
        self.a(f"v_mov_b32 {d}, {self.fmt(x)}")
        self.val[d] = self.get(x).copy()

    def bfe(self, d, x, off, w):
        self.a(f"v_bfe_u32 {d}, {x}, {off}, {w}")
        self.val[d] = (self.get(x) >> off) & ((1 << w) - 1)

    def lshl_add(self, d, x, n, y):
        self.a(f"v_lshl_add_u32 {d}, {x}, {n}, {self.fmt(y)}")
        self.val[d] = ((self.get(x) << n) + self.get(y)) & 0xFFFFFFFF

    def lshl_or(self, d, x, n, y):
        self.a(f"v_lshl_or_b32 {d}, {x}, {n}, {self.fmt(y)}")
        self.val[d] = ((self.get(x) << n) | self.get(y)) & 0xFFFFFFFF

    def check(self, d, expect, waves=None):
        got = self.val[d]
        exp = np.broadcast_to(np.asarray(expect, dtype=np.int64), self.shape) & 0xFFFFFFFF
        if waves is not None:
            got, exp = got[waves], exp[waves]
        assert (got == exp).all(), (d, got[0][:16], exp[0][:16])


def mask_of(r):
    r = np.asarray(r)
    return (((r >> 1) & 1) << 2) | ((((r >> 2) ^ (r >> 3)) & 1) << 1) | ((r >> 3) & 1)


def emit_mask(c, d, r, t1, t2):
    c.bfe(t1, r, 1, 1)
    c.bfe(d, r, 3, 1)
    c.bfe(t2, r, 2, 1)
    c.xor(t2, d, t2)
    c.lshl_or(d, t2, 1, d)
    c.lshl_or(d, t1, 2, d)
```

```python
import math
import struct
import sys

import numpy as np

from asmlib import Asm, v, s, interleave
from lanecalc import LC, mask_of, emit_mask

NAME = "concat_heads__mha_block_cached__mha_block_cached__near_ridge"


def f32(x):
    return struct.unpack("<I", struct.pack("<f", x))[0]


CSCALE = (192 ** -0.5) * math.log2(math.e)
TLAZY = 8.0

O_BYTES = 2 * 36 * 384 * 1024
PART_OFF = 32 * 1024 * 1024
PART_BYTES = 4 * 2 * 36 * 20 * 4096

UNIT = 12288
KR = 0
VR = 5 * UNIT
PR = 10 * UNIT
STG = VR + 3 * UNIT
SS = 21504
XOFF = 12288
PBUF = [PR, PR + 16384]
PE = PR + 32768
SMALL = PE + 4096
ALPHA = SMALL
ALPHAE = SMALL + 2048
ME = SMALL + 2304
LE = SMALL + 2560
QE = STG + 2 * SS
QH3 = QE + 6144
MERGE = STG
LDS_K1 = 163840

LANE = np.arange(64).reshape(1, 64)
WV = np.arange(8).reshape(8, 1)
W4 = WV & 3


def srd(a, d, lo, hi, nbytes):
    a(f"s_mov_b32 {s(d)}, {s(lo)}")
    a(f"s_and_b32 {s(d + 1)}, {s(hi)}, 0xffff")
    a(f"s_mov_b32 {s(d + 2)}, {hex(nbytes)}")
    a(f"s_mov_b32 {s(d + 3)}, 0x20000")


def tr_addr(c, d, row, chunk, sub, base, t1, t2, t3):
    emit_mask(c, t3, row, t1, t2)
    c.xor(t3, chunk, t3)
    c.mul24(t1, 384, row)
    c.lshl_add(t3, t3, 4, t1)
    if sub is not None:
        c.lshl_add(t3, sub, 3, t3)
    c.add(d, base, t3)


def tr_ref(row, chunk, sub, base):
    return base + row * 384 + ((chunk ^ mask_of(row)) << 4) + sub * 8


class VMQ:
    def __init__(self):
        self.q = []

    def issue(self, tag, n=1):
        self.q += [tag] * n

    def wait_for(self, tags):
        last = -1
        for i, t in enumerate(self.q):
            if t in tags:
                last = i
        n = len(self.q) - 1 - last
        self.q = self.q[last + 1:]
        return n


def gen_k1(a, cfg):
    NXT = cfg.get("nxt", 3)
    NSX = cfg.get("nsx", 2)
    KVNT = cfg.get("kvnt", " nt")
    tilesX = list(range(NXT))
    tilesY = list(range(NXT, 6))
    SX, SWQ, SK, SV, SWS = 8, 12, 16, 20, 24
    sBLK, sB, sH, sRND, sWV, sW, sKV, sC = 28, 29, 30, 31, 32, 33, 34, 35
    sWOFF, sX0, sX1, sXE, sT0, sT1, sT2, sONES = 36, 37, 38, 39, 40, 41, 42, 43
    sM3, sM2, sNC, sTC, sOM, sOE, sH0 = 44, 45, 46, 47, 48, 49, 50
    sP = 64
    vL = 0
    T = [f"v{i}" for i in range(1, 10)]
    pKV = [10, 11, 12]
    pW = [13, 14, 15]
    pX = 9
    aW = {(tp, jj): 16 + 2 * tp + jj for tp in range(2) for jj in range(2)}
    aXB = [20, 21]
    aWe = {(i, jj): 22 + 2 * i + jj for i in range(3) for jj in range(2)}
    aXe = 28
    aLin = 29
    aM = [30, 31, 32, 33]
    aE = [34, 35, 36, 37]
    cE = [38, 39, 40, 41]
    aAl = 42
    aAe = 43
    aPw = 44
    aQE = 45
    vM, vNM, vTH, vAL = 46, 47, 48, 49
    vMe, vNMe, vTHe, vALe = 50, 51, 52, 53
    vt0, vt1 = 54, 55
    QACC = 128
    QSA = 192
    QA = {0: 56, 1: 72}
    QB = {0: 88, 1: 92}
    QAE = 96
    QBE = 108
    XQ, XQE, XS, XSE, XKF, XP, XPE = 56, 104, [128, 144], 160, 168, [200, 208], 216
    YO, YOE, YVF, YP, YPE = 56, 152, 200, 232, 248
    vLs, vLe = 46, 47
    vAa, vAb, vAeY = 48, 49, 50

    K = "k1"
    a.label("att_kernel")
    a(f"s_cmp_ge_u32 s2, 256")
    a(f"s_cbranch_scc1 {K}_end")
    a(f"s_load_dwordx16 {s(sP, 16)}, s[0:1], 0")
    a(f"s_load_dwordx8 {s(sP + 16, 8)}, s[0:1], 64")
    a(f"s_load_dwordx2 {s(sP + 24, 2)}, s[0:1], 96")
    c = LC(a)
    c.shr(T[0], 6, "v0")
    a(f"v_readfirstlane_b32 {s(sWV)}, {T[0]}")
    c.and_("v0", 63, "v0")
    c.set_s(s(sWV), np.arange(8))
    a(f"s_and_b32 {s(sW)}, {s(sWV)}, 3")
    c.set_s(s(sW), np.arange(8) & 3)
    a(f"""
    s_bfe_u32 {s(sBLK)}, s2, 0x10002
    s_bfe_u32 {s(sB)}, s2, 0x30003
    s_and_b32 {s(sT0)}, s2, 3
    s_lshr_b32 {s(sT1)}, s2, 6
    s_lshl_b32 {s(sT0)}, {s(sT0)}, 2
    s_add_u32 {s(sH0)}, {s(sT0)}, {s(sT1)}
    s_mov_b32 {s(sRND)}, 0
    s_mov_b32 {s(sC)}, {hex(f32(CSCALE))}
    s_mov_b32 {s(sNC)}, {hex(f32(-CSCALE))}
    s_mov_b32 {s(sTC)}, {hex(f32(TLAZY / CSCALE))}
    s_mov_b32 {s(sONES)}, 0x3f803f80
    s_mul_i32 {s(sM3)}, {s(sW)}, 3072
    s_lshl_b32 {s(sM2)}, {s(sW)}, 11
    """)
    c.set_s(s(sM3), (np.arange(8) & 3) * 3072)
    c.set_s(s(sM2), (np.arange(8) & 3) * 2048)
    L = "v0"
    fr, fc, fh, fg, fG1 = "v46", "v47", "v48", "v49", "v50"
    c.bfe(fr, L, 2, 2)
    c.and_(fc, 3, L)
    c.shr(fh, 5, L)
    c.shr(fg, 4, L)
    c.bfe(fG1, L, 4, 1)
    r_, c_, h_, g_, G1_ = (LANE >> 2) & 3, LANE & 3, LANE >> 5, LANE >> 4, (LANE >> 4) & 1
    row, chk, sub = "v51", "v52", "v53"
    t1, t2, t3 = T[0], T[1], T[2]
    for j in range(3):
        c.add(T[3], 64 * j, L)
        c.shr(T[4], 3, T[3])
        c.mul24(T[4], 11, T[4])
        c.shr(T[4], 5, T[4])
        c.mul24(T[5], 24, T[4])
        c.sub(T[5], T[3], T[5])
        c.mov(T[6], s(sW))
        c.lshl_add(row, T[6], 3, T[4])
        emit_mask(c, t3, row, t1, t2)
        c.xor(T[6], L, t3)
        c.lshl_add(v(pKV[j]), T[6], 4, s(sM3))
        c.xor(T[5], T[5], t3)
        c.mul24(T[6], 12288, row)
        c.lshl_add(T[6], T[5], 4, T[6])
        c.add(v(pW[j]), (-1024 * j) & 0xFFFFFFFF if j else 0, T[6])
        p = 64 * j + LANE
        rr = p // 24
        rw = 8 * W4 + rr
        c.check(v(pKV[j]), rw * 384 + (((p % 24) ^ mask_of(rw)) * 16) - 1024 * j)
        c.check(v(pW[j]), rw * 12288 + (((p % 24) ^ mask_of(rw)) * 16) - 1024 * j)
    c.sub(T[3], 0, fg)
    c.and_(T[3], 3, T[3])
    c.xor(T[3], fc, T[3])
    c.shr(T[4], 2, L)
    c.mul24(T[4], 1280, T[4])
    c.lshl_add(T[7], T[3], 4, T[4])
    c.check(T[7], (LANE >> 2) * 1280 + (((LANE & 3) ^ ((-(LANE >> 4)) & 3)) << 4))
    c.and_(T[3], 1, fc)
    c.lshl_or(T[3], fG1, 1, T[3])
    c.shr(sub, 1, fc)
    for tp in range(2):
        for jj in range(2):
            c.lshl_or(row, fh, 3, fr)
            if jj:
                c.add(row, 4, row)
            c.or_(chk, 4 * tp, T[3])
            tr_addr(c, v(aW[tp, jj]), row, chk, sub, STG, t1, t2, t3)
            c.check(v(aW[tp, jj]), tr_ref(8 * h_ + 4 * jj + r_, 4 * tp + 2 * G1_ + (c_ & 1), c_ >> 1, STG))
    c.bfe(T[4], L, 2, 2)
    c.sub(T[4], 0, T[4])
    c.and_(T[4], 3, T[4])
    c.and_(T[5], 31, L)
    c.shl(T[5], 6, T[5])
    c.add(T[5], s(sM2), T[5])
    for s2 in range(2):
        c.or_(T[6], 2 * s2, fh)
        c.xor(T[6], T[4], T[6])
        c.lshl_add(T[6], T[6], 4, T[5])
        c.add(v(aXB[s2]), STG + XOFF, T[6])
        q = LANE & 31
        c.check(v(aXB[s2]), STG + XOFF + (32 * W4 + q) * 64 + (((2 * s2 + h_) ^ ((-(q >> 2)) & 3)) << 4))
    c.xor(T[6], T[4], fg)
    c.and_(T[5], 15, L)
    c.shl(T[5], 6, T[5])
    c.lshl_add(T[6], T[6], 4, T[5])
    c.add(v(aXe), STG + XOFF + 8192, T[6])
    q16 = LANE & 15
    c.check(v(aXe), STG + XOFF + 8192 + q16 * 64 + ((g_ ^ ((-(q16 >> 2)) & 3)) << 4))
    c.shl(v(aLin), 4, L)
    c.and_(T[5], 31, L)
    c.shl(T[5], 2, T[5])
    c.mov(T[6], s(sW))
    c.lshl_add(T[5], T[6], 8, T[5])
    c.add(v(aAl), ALPHA, T[5])
    c.and_(T[5], 15, L)
    c.shl(v(aAe), 2, T[5])
    c.lshl_add(T[5], T[6], 12, v(aLin))
    c.add(v(aPw), PR, T[5])
    c.and_(T[5], 15, L)
    c.mul24(T[5], 384, T[5])
    c.add(v(aQE), QE, T[5])
    c.mov(v(pX), T[7])
    T = T[:8]

    a("s_waitcnt lgkmcnt(0)")
    a(f"s_cmp_eq_u32 {s(sBLK)}, 0")
    for i in range(4):
        a(f"s_cselect_b64 {s(sP + 2 * i, 2)}, {s(sP + 2 * i, 2)}, {s(sP + 10 + 2 * i, 2)}")
    srd(a, SX, sP + 0, sP + 1, 8 * 144 * 640 * 2)
    srd(a, SK, sP + 2, sP + 3, 8 * 32 * 512 * 192 * 2)
    srd(a, SV, sP + 4, sP + 5, 8 * 32 * 512 * 192 * 2)
    srd(a, SWQ, sP + 6, sP + 7, 640 * 6144 * 2)
    srd(a, SWS, sP + 24, sP + 25, O_BYTES)
    a(f"s_cmp_ge_u32 {s(sWV)}, 4")
    a(f"s_cbranch_scc1 {K}_ysetup")

    rare_blocks = []

    def role_setup(role):
        cc = LC(a)
        cc.val = dict(c.val)
        waves = [0, 1, 2, 3] if role == "X" else [4, 5, 6, 7]
        i0, n = (0, NSX) if role == "X" else (NSX, 3 - NSX)
        cc.and_(sub, 1, fc)
        for i in range(n):
            cc.mov(T[4], s(sW))
            cc.mul24(T[4], 6, T[4])
            cc.shr(T[5], 1, fc)
            cc.add(T[4], T[4], T[5])
            cc.add(chk, 2 * (i0 + i), T[4])
            for jj in range(2):
                cc.lshl_or(row, fg, 3, fr)
                if jj:
                    cc.add(row, 4, row)
                tr_addr(cc, v(aWe[i, jj]), row, chk, sub, STG, t1, t2, t3)
                dt = 3 * W4 + i0 + i
                cc.check(v(aWe[i, jj]), tr_ref(8 * g_ + 4 * jj + r_, 2 * dt + (c_ >> 1), c_ & 1, STG), waves)
        if role == "X":
            cc.and_(row, 31, L)
            for i in range(4):
                cc.or_(chk, 2 * i, fh)
                tr_addr(cc, v(aM[i]), row, chk, None, KR, t1, t2, t3)
                cc.check(v(aM[i]), tr_ref(LANE & 31, 2 * i + h_, 0, KR))
            cc.and_(row, 15, L)
            for p in range(2):
                cc.or_(chk, 4 * p, fg)
                tr_addr(cc, v(aE[p]), row, chk, None, KR, t1, t2, t3)
                cc.check(v(aE[p]), tr_ref(LANE & 15, 4 * p + g_, 0, KR))
        else:
            cc.and_(T[3], 1, fc)
            cc.lshl_or(T[3], fG1, 1, T[3])
            cc.shr(sub, 1, fc)
            for tp in range(2):
                for jj in range(2):
                    cc.lshl_or(row, fh, 2, fr)
                    if jj:
                        cc.add(row, 8, row)
                    cc.or_(chk, 4 * tp, T[3])
                    tr_addr(cc, v(aM[2 * tp + jj]), row, chk, sub, VR, t1, t2, t3)
                    cc.check(v(aM[2 * tp + jj]),
                             tr_ref(8 * jj + 4 * h_ + r_, 4 * tp + 2 * G1_ + (c_ & 1), c_ >> 1, VR))
            cc.and_(sub, 1, fc)
            cc.lshl_or(row, fg, 2, fr)
            for i in range(4):
                cc.shr(chk, 1, fc)
                cc.or_(chk, 2 * i, chk)
                tr_addr(cc, v(aE[i]), row, chk, sub, VR, t1, t2, t3)
                cc.check(v(aE[i]), tr_ref(4 * g_ + r_, 2 * i + (c_ >> 1), c_ & 1, VR))

    def task_setup():
        a(f"""
        s_lshl_b32 {s(sT0)}, {s(sRND)}, 4
        s_add_u32 {s(sH)}, {s(sH0)}, {s(sT0)}
        s_lshl_b32 {s(sT0)}, {s(sB)}, 5
        s_add_u32 {s(sT0)}, {s(sT0)}, {s(sH)}
        s_mul_i32 {s(sKV)}, {s(sT0)}, 196608
        s_mul_i32 {s(sWOFF)}, {s(sH)}, 384
        s_and_b32 {s(sT0)}, {s(sB)}, 1
        s_mul_i32 {s(sT1)}, {s(sB)}, 144
        s_lshl_b32 {s(sT2)}, {s(sT0)}, 4
        s_add_u32 {s(sT2)}, {s(sT2)}, {s(sT1)}
        s_lshl_b32 {s(sX0)}, {s(sW)}, 5
        s_add_u32 {s(sX0)}, {s(sX0)}, {s(sT2)}
        s_mul_i32 {s(sX0)}, {s(sX0)}, 1280
        s_add_u32 {s(sX1)}, {s(sX0)}, {20480 - 1024}
        s_xor_b32 {s(sT2)}, {s(sT0)}, 1
        s_lshl_b32 {s(sT2)}, {s(sT2)}, 7
        s_add_u32 {s(sT2)}, {s(sT2)}, {s(sT1)}
        s_mul_i32 {s(sXE)}, {s(sT2)}, 1280
        """)
        a(f"""
        s_mul_i32 {s(sT1)}, {s(sB)}, 9
        s_add_u32 {s(sT1)}, {s(sT1)}, {s(sT0)}
        s_lshr_b32 {s(sT1)}, {s(sT1)}, 1
        s_add_u32 {s(sT1)}, {s(sT1)}, {s(sW)}
        s_mul_i32 {s(sT2)}, {s(sBLK)}, 36
        s_add_u32 {s(sT1)}, {s(sT1)}, {s(sT2)}
        s_mul_i32 {s(sT1)}, {s(sT1)}, 384
        s_mul_i32 {s(sOM)}, {s(sH)}, 12
        s_add_u32 {s(sT1)}, {s(sT1)}, {s(sOM)}
        s_lshr_b32 {s(sOE)}, {s(sB)}, 1
        s_mul_i32 {s(sOE)}, {s(sOE)}, 9
        s_add_u32 {s(sOE)}, {s(sOE)}, 4
        s_add_u32 {s(sOE)}, {s(sOE)}, {s(sT2)}
        s_mul_i32 {s(sOE)}, {s(sOE)}, 384
        s_add_u32 {s(sOE)}, {s(sOE)}, {s(sOM)}
        s_mul_i32 {s(sT2)}, {s(sW)}, 3
        s_add_u32 {s(sOE)}, {s(sOE)}, {s(sT2)}
        s_lshl_b32 {s(sOE)}, {s(sOE)}, 10
        s_lshl_b32 {s(sT0)}, {s(sT0)}, 8
        s_add_u32 {s(sOE)}, {s(sOE)}, {s(sT0)}
        s_lshl_b32 {s(sOM)}, {s(sT1)}, 10
        """)

    def kv_dma(kind, half):
        base = (KR if kind == "K" else VR) + (half % 5) * UNIT
        sr = SK if kind == "K" else SV
        out = [f"s_add_u32 m0, {s(sM3)}, {base}",
               f"s_add_u32 {s(sT0)}, {s(sKV)}, {half * UNIT}"]
        for j in range(3):
            off = f" offset:{1024 * j}" if j else ""
            out.append(f"buffer_load_dwordx4 {v(pKV[j])}, {s(sr, 4)}, {s(sT0)} offen{off}{KVNT} lds")
        return out

    def stage_dma(k, vq):
        st = STG + (k % 3) * SS
        lab = a.newlabel("KS_skip")
        out = [f"s_cmp_lg_u32 {s(sW)}, {k % 4}",
               f"s_mov_b32 m0, {st + XOFF + 8192}",
               f"s_cbranch_scc1 {lab}",
               f"buffer_load_dwordx4 {v(pX)}, {s(SX, 4)}, {s(sXE)} offen lds",
               f"{lab}:",
               f"s_add_u32 m0, {s(sM3)}, {st}",
               f"s_add_u32 {s(sXE)}, {s(sXE)}, 64"]
        for j in range(3):
            off = f" offset:{1024 * j}" if j else ""
            out.append(f"buffer_load_dwordx4 {v(pW[j])}, {s(SWQ, 4)}, {s(sWOFF)} offen{off} lds")
        out += [f"s_add_u32 m0, {s(sM2)}, {st + XOFF}",
                f"s_add_u32 {s(sWOFF)}, {s(sWOFF)}, {32 * 12288}",
                f"buffer_load_dwordx4 {v(pX)}, {s(SX, 4)}, {s(sX0)} offen lds",
                f"buffer_load_dwordx4 {v(pX)}, {s(SX, 4)}, {s(sX1)} offen offset:1024 lds",
                f"s_add_u32 {s(sX0)}, {s(sX0)}, 64",
                f"s_add_u32 {s(sX1)}, {s(sX1)}, 64"]
        vq.issue(("S", k), 5)
        return out

    KVPRE = [("K", 0), ("K", 1), ("V", 0), ("V", 1), ("K", 2), ("K", 3), ("V", 2), ("K", 4)]

    def qp_phase(role, vq):
        tiles = tilesX if role == "X" else tilesY
        ns = NSX if role == "X" else 3 - NSX
        if role == "Y":
            for k in range(2):
                for x in stage_dma(k, vq):
                    a(x)

        def reads(k, s2):
            st = (k % 3) * SS
            out = [f"ds_read_b128 {v(QB[s2], 4)}, {v(aXB[s2])} offset:{st}"]
            for i, Tt in enumerate(tiles):
                for jj in range(2):
                    out.append(f"ds_read_b64_tr_b16 {v(QA[s2] + 4 * i + 2 * jj, 2)}, {v(aW[Tt & 1, jj])} "
                               f"offset:{st + 16 * s2 * 384 + (Tt >> 1) * 128}")
            if s2 == 1 and ns:
                out.append(f"ds_read_b128 {v(QBE, 4)}, {v(aXe)} offset:{st}")
                for i in range(ns):
                    for jj in range(2):
                        out.append(f"ds_read_b64_tr_b16 {v(QAE + 4 * i + 2 * jj, 2)}, {v(aWe[i, jj])} offset:{st}")
            return out

        def mfmas(k, s2):
            out = []
            for i, Tt in enumerate(tiles):
                acc = v(QACC + 16 * i, 16)
                cin = "0" if (k == 0 and s2 == 0) else acc
                out.append(f"v_mfma_f32_32x32x16_bf16 {acc}, {v(QA[s2] + 4 * i, 4)}, {v(QB[s2], 4)}, {cin}")
            if s2 == 1:
                for i in range(ns):
                    acc = v(QSA + 4 * i, 4)
                    cin = "0" if k == 0 else acc
                    out.append(f"v_mfma_f32_16x16x32_bf16 {acc}, {v(QAE + 4 * i, 4)}, {v(QBE, 4)}, {cin}")
            return out

        for k in range(20):
            if role == "Y":
                a(f"s_waitcnt vmcnt({vq.wait_for({('S', k)})})")
            a("s_barrier")
            for x in reads(k, 0):
                a(x)
            dma = []
            if role == "Y" and k + 2 < 20:
                dma = stage_dma(k + 2, vq)
            if role == "X" and k < len(KVPRE):
                dma = kv_dma(*KVPRE[k])
                vq.issue(KVPRE[k], 3)
            if k > 0:
                m = mfmas(k - 1, 1)
                a(m[0])
                for x in dma:
                    a(x)
                for x in m[1:]:
                    a(x)
            else:
                for x in dma:
                    a(x)
            for x in reads(k, 1):
                a(x)
            for x in mfmas(k, 0):
                a(x)
            a("s_waitcnt lgkmcnt(0)")
        for x in mfmas(19, 1):
            a(x)
        i0 = 0 if role == "X" else NSX
        a(f"v_lshrrev_b32 {T[0]}, 4, {L}")
        a(f"v_lshl_add_u32 {T[0]}, {T[0]}, 3, {v(aQE)}")
        a(f"s_mul_i32 {s(sT0)}, {s(sW)}, 96")
        a(f"v_add_u32 {T[0]}, {s(sT0)}, {T[0]}")
        if role == "X":
            for i, Tt in enumerate(tiles):
                for e in range(8):
                    a(f"v_cvt_pk_bf16_f32 {v(XQ + 8 * Tt + e)}, {v(QACC + 16 * i + 2 * e)}, {v(QACC + 16 * i + 2 * e + 1)}")
        else:
            a(f"s_mul_i32 {s(sT0)}, {s(sW)}, {len(tilesY) * 2048}")
            a(f"s_add_u32 {s(sT0)}, {s(sT0)}, {STG}")
            a(f"s_cmp_eq_u32 {s(sW)}, 3")
            a(f"s_cselect_b32 {s(sT0)}, {QH3}, {s(sT0)}")
            a(f"v_add_u32 {T[1]}, {s(sT0)}, {v(aLin)}")
            for i, Tt in enumerate(tiles):
                for e in range(8):
                    a(f"v_cvt_pk_bf16_f32 {v(QA[0] + 8 * i + e)}, {v(QACC + 16 * i + 2 * e)}, {v(QACC + 16 * i + 2 * e + 1)}")
                for hf in range(2):
                    a(f"ds_write_b128 {T[1]}, {v(QA[0] + 8 * i + 4 * hf, 4)} offset:{(2 * i + hf) * 1024}")
        for i in range(ns):
            a(f"v_cvt_pk_bf16_f32 {v(QSA + 4 * i)}, {v(QSA + 4 * i)}, {v(QSA + 4 * i + 1)}")
            a(f"v_cvt_pk_bf16_f32 {v(QSA + 4 * i + 1)}, {v(QSA + 4 * i + 2)}, {v(QSA + 4 * i + 3)}")
            a(f"ds_write_b64 {T[0]}, {v(QSA + 4 * i, 2)} offset:{32 * (i0 + i)}")
        a("s_waitcnt lgkmcnt(0)")

    def softmax(S, n, P, st, waddr, aaddr, woff, aoff, small):
        M_, NM_, TH_, AL_ = st
        lab = a.newlabel("sm")
        out = []
        t = v(vt0)
        out.append(f"v_max3_f32 {t}, {v(S)}, {v(S + 1)}, {v(S + 2)}")
        i = 3
        while i + 1 < n:
            out.append(f"v_max3_f32 {t}, {t}, {v(S + i)}, {v(S + i + 1)}")
            i += 2
        out.append(f"v_max_f32 {t}, {t}, {v(S + n - 1)}")
        out.append(f"v_mov_b32 {v(AL_)}, 1.0")
        out.append(f"v_cmp_gt_f32 vcc, {t}, {v(TH_)}")
        out.append(f"s_cbranch_vccnz R_{lab}\nK_{lab}:")
        out.append(f"ds_write_b32 {v(aaddr)}, {v(AL_)} offset:{aoff}")
        for q in range(n // 4):
            for e in range(4):
                r = S + 4 * q + e
                out.append(f"v_fma_f32 {v(r)}, {v(r)}, {s(sC)}, {v(NM_)}")
            for e in range(4):
                r = S + 4 * q + e
                out.append(f"v_exp_f32 {v(r)}, {v(r)}")
            if q > 0:
                for e in range(2):
                    r = S + 4 * (q - 1) + 2 * e
                    out.append(f"v_cvt_pk_bf16_f32 {v(P + 2 * (q - 1) + e)}, {v(r)}, {v(r + 1)}")
            if q == 2:
                out.append(f"ds_write_b128 {v(waddr)}, {v(P, 4)} offset:{woff}")
        q = n // 4
        for e in range(2):
            r = S + 4 * (q - 1) + 2 * e
            out.append(f"v_cvt_pk_bf16_f32 {v(P + 2 * (q - 1) + e)}, {v(r)}, {v(r + 1)}")
        if n == 16:
            out.append(f"ds_write_b128 {v(waddr)}, {v(P + 4, 4)} offset:{woff + 1024}")
        else:
            out.append(f"ds_write_b128 {v(waddr)}, {v(P, 4)} offset:{woff}")
        t2 = v(vt1)
        rb = [f"R_{lab}:",
              f"v_mov_b32 {t2}, {t}",
              f"v_permlane32_swap_b32 {t}, {t2}",
              f"v_max_f32 {t}, {t}, {t2}"]
        if small:
            rb += [f"v_mov_b32 {t2}, {t}",
                   f"v_permlane16_swap_b32 {t}, {t2}",
                   f"v_max_f32 {t}, {t}, {t2}"]
        rb += [f"v_max_f32 {t}, {t}, {v(M_)}",
               f"v_sub_f32 {t2}, {v(M_)}, {t}",
               f"v_mul_f32 {t2}, {s(sC)}, {t2}",
               f"v_exp_f32 {v(AL_)}, {t2}",
               f"v_mov_b32 {v(M_)}, {t}",
               f"v_mul_f32 {v(NM_)}, {s(sNC)}, {t}",
               f"v_add_f32 {v(TH_)}, {s(sTC)}, {t}",
               f"s_branch K_{lab}"]
        rare_blocks.append(rb)
        return out

    def unit_sel(hA, dst):
        a(f"s_bitcmp1_b32 {s(sW)}, 0")
        a(f"s_cselect_b32 {s(dst)}, {(hA + 1) % 5}, {hA % 5}")
        a(f"s_mul_i32 {s(dst)}, {s(dst)}, {UNIT}")

    def att_x(vq):
        issued = [5]
        for t in range(9):
            need = {("K", 2 * t), ("K", 2 * t + 1), ("V", 2 * t - 2), ("V", 2 * t - 1)}
            if any(q in need for q in vq.q):
                a(f"s_waitcnt vmcnt({vq.wait_for(need)})")
            a("s_barrier")
            if t == 8:
                break
            dma = []
            while issued[0] <= min(2 * t + 4, 15):
                dma += kv_dma("K", issued[0])
                vq.issue(("K", issued[0]), 3)
                issued[0] += 1
            if t == 0:
                a(f"s_mul_i32 {s(sT0)}, {s(sW)}, {len(tilesY) * 2048}")
                a(f"s_add_u32 {s(sT0)}, {s(sT0)}, {STG}")
                a(f"s_cmp_eq_u32 {s(sW)}, 3")
                a(f"s_cselect_b32 {s(sT0)}, {QH3}, {s(sT0)}")
                a(f"v_add_u32 {T[1]}, {s(sT0)}, {v(aLin)}")
                a(f"v_lshrrev_b32 {T[0]}, 4, {L}")
                a(f"v_lshl_add_u32 {T[0]}, {T[0]}, 4, {v(aQE)}")
                for i, Tt in enumerate(tilesY):
                    for hf in range(2):
                        a(f"ds_read_b128 {v(XQ + 8 * Tt + 4 * hf, 4)}, {T[1]} offset:{(2 * i + hf) * 1024}")
                for sp in range(6):
                    a(f"ds_read_b128 {v(XQE + 4 * sp, 4)}, {T[0]} offset:{64 * sp}")
                for r in (vM, vTH, vMe, vTHe):
                    a(f"v_mov_b32 {v(r)}, 0xff800000")
                a("s_waitcnt lgkmcnt(0)")
                if cfg.get("dbgq"):
                    srd(a, 52, sP + 24, sP + 25, 0x10000000)
                    a(f"s_lshl_b32 {s(sT0)}, s2, 1")
                    a(f"s_add_u32 {s(sT0)}, {s(sT0)}, {s(sRND)}")
                    a(f"s_lshl_b32 {s(sT0)}, {s(sT0)}, 2")
                    a(f"s_add_u32 {s(sT0)}, {s(sT0)}, {s(sW)}")
                    a(f"s_mul_i32 {s(sT0)}, {s(sT0)}, 12288")
                    a(f"s_add_u32 {s(sT0)}, {s(sT0)}, 0x4000000")
                    for fi in range(12):
                        a(f"buffer_store_dwordx4 {v(XQ + 4 * fi, 4)}, {v(aLin)}, s[52:55], {s(sT0)} offen")
                        a(f"s_add_u32 {s(sT0)}, {s(sT0)}, 1024")
                    a("s_waitcnt vmcnt(0)")
                    vq.q = []
            rd, mf = [], []
            for bk in range(2):
                u = ((2 * t + bk) % 5) * UNIT
                for sx in range(12):
                    n = 12 * bk + sx
                    f = XKF + 4 * (n % 8)
                    rd.append(f"ds_read_b128 {v(f, 4)}, {v(aM[sx & 3])} offset:{u + (sx >> 2) * 128}")
                    acc = v(XS[bk], 16)
                    mf.append(f"v_mfma_f32_32x32x16_bf16 {acc}, {v(f, 4)}, {v(XQ + 4 * sx, 4)}, {'0' if sx == 0 else acc}")
            AH = 6
            for x in rd[:AH]:
                a(x)
            seqA = []
            for n in range(14):
                seqA.append(mf[n])
                if n + AH < 24:
                    seqA.append(rd[n + AH])
                if n == 0:
                    seqA += dma
            for x in seqA:
                a(x)
            pb = PBUF[t & 1] - PR
            smA = softmax(XS[0], 16, XP[0], (vM, vNM, vTH, vAL), aPw, aAl, pb, (t & 1) * 1024, False)
            main = []
            for n in range(14, 24):
                item = mf[n]
                if n + AH < 24:
                    item += "\n" + rd[n + AH]
                main.append(item)
            for x in interleave(main, smA):
                a(x)
            for x in softmax(XS[1], 16, XP[1], (vM, vNM, vTH, vAL), aPw, aAl, pb + 2048, (t & 1) * 1024 + 128, False):
                a(x)
            lab = a.newlabel("xe")
            a(f"s_lshr_b32 {s(sT0)}, {s(sW)}, 1")
            a(f"s_cmp_lg_u32 {s(sT0)}, {t & 1}")
            a(f"s_cbranch_scc1 {lab}")
            unit_sel(2 * t, sT0)
            for p in range(2):
                a(f"v_add_u32 {v(cE[p])}, {s(sT0)}, {v(aE[p])}")
            rd, mf = [], []
            for sp in range(6):
                for kt in range(2):
                    n = 2 * sp + kt
                    f = XKF + 4 * (n % 8)
                    rd.append(f"ds_read_b128 {v(f, 4)}, {v(cE[sp & 1])} offset:{16 * kt * 384 + (sp >> 1) * 128}")
                    acc = v(XSE + 4 * kt, 4)
                    mf.append(f"v_mfma_f32_16x16x32_bf16 {acc}, {v(f, 4)}, {v(XQE + 4 * sp, 4)}, {'0' if sp == 0 else acc}")
            for x in rd[:AH]:
                a(x)
            for n in range(12):
                a(mf[n])
                if n + AH < 12:
                    a(rd[n + AH])
            a(f"s_lshl_b32 {s(sT0)}, {s(sW)}, 10")
            a(f"s_add_u32 {s(sT0)}, {s(sT0)}, {PE}")
            a(f"v_add_u32 {v(cE[2])}, {s(sT0)}, {v(aLin)}")
            a(f"s_lshl_b32 {s(sT0)}, {s(sW)}, 6")
            a(f"s_add_u32 {s(sT0)}, {s(sT0)}, {SMALL}")
            a(f"v_add_u32 {v(cE[3])}, {s(sT0)}, {v(aAe)}")
            for x in softmax(XSE, 8, XPE, (vMe, vNMe, vTHe, vALe), cE[2], cE[3], 0, ALPHAE - SMALL, True):
                a(x)
            if t >= 6:
                a(f"ds_write_b32 {v(cE[3])}, {v(vMe)} offset:{ME - SMALL}")
            a.label(lab)
            a("s_waitcnt lgkmcnt(0)")
        a("s_barrier")
        a("s_barrier")
        a(f"s_mul_i32 {s(sT0)}, {s(sW)}, 3072")
        a(f"s_add_u32 {s(sT0)}, {s(sT0)}, {MERGE}")
        a(f"v_add_u32 {T[0]}, {s(sT0)}, {v(aLin)}")
        a(f"v_add_u32 {T[1]}, {SMALL}, {v(aAe)}")
        R = 128
        for wp in range(4):
            a(f"ds_read_b32 {v(R + 48 + wp)}, {T[1]} offset:{LE - SMALL + 64 * wp}")
        for i in range(3):
            for wp in range(4):
                a(f"ds_read_b128 {v(R + 16 * i + 4 * wp, 4)}, {T[0]} offset:{wp * 12288 + i * 1024}")
        a(f"v_add_f32 {v(R + 48)}, {v(R + 48)}, {v(R + 49)}")
        a(f"v_add_f32 {v(R + 50)}, {v(R + 50)}, {v(R + 51)}")
        a(f"v_add_f32 {v(R + 48)}, {v(R + 48)}, {v(R + 50)}")
        a(f"v_rcp_f32 {v(R + 48)}, {v(R + 48)}")
        a(f"v_lshlrev_b32 {T[2]}, 2, {v(aAe)}")
        a(f"v_lshrrev_b32 {T[3]}, 5, {L}")
        a(f"v_lshl_add_u32 {T[2]}, {T[3]}, 9, {T[2]}")
        a(f"v_bfe_u32 {T[3]}, {L}, 4, 1")
        a(f"v_lshl_add_u32 {T[2]}, {T[3]}, 3, {T[2]}")
        for i in range(3):
            b0 = R + 16 * i
            for e in range(4):
                a(f"v_add_f32 {v(b0 + e)}, {v(b0 + e)}, {v(b0 + 4 + e)}")
                a(f"v_add_f32 {v(b0 + 8 + e)}, {v(b0 + 8 + e)}, {v(b0 + 12 + e)}")
            for e in range(4):
                a(f"v_add_f32 {v(b0 + e)}, {v(b0 + e)}, {v(b0 + 8 + e)}")
            for e in range(4):
                a(f"v_mul_f32 {v(b0 + e)}, {v(b0 + e)}, {v(R + 48)}")
            a(f"v_cvt_pk_bf16_f32 {v(b0 + 4)}, {v(b0)}, {v(b0 + 1)}")
            a(f"v_cvt_pk_bf16_f32 {v(b0 + 5)}, {v(b0 + 2)}, {v(b0 + 3)}")
            a(f"buffer_store_dwordx2 {v(b0 + 4, 2)}, {T[2]}, {s(SWS, 4)}, {s(sOE)} offen offset:{1024 * i}")
            vq.issue("st")
        a("s_barrier")

    def rescale_block(regs, al):
        lab = a.newlabel("rs")
        rb = [f"R_{lab}:", "s_nop 15"]
        for r in regs:
            rb.append(f"v_mul_f32 {v(r)}, {v(al)}, {v(r)}")
        rb += ["s_nop 1", f"s_branch K_{lab}"]
        rare_blocks.append(rb)
        return [f"v_cmp_neq_f32 vcc, 1.0, {v(al)}", f"s_cbranch_vccnz R_{lab}", f"K_{lab}:"]

    def att_y(vq):
        issued = [3]
        for t in range(9):
            need = {("V", 2 * t - 2), ("V", 2 * t - 1)}
            if any(q in need for q in vq.q):
                a(f"s_waitcnt vmcnt({vq.wait_for(need)})")
            a("s_barrier")
            if t == 0:
                for r in list(range(YO, YO + 96)) + list(range(YOE, YOE + 48)) + [vLs, vLe]:
                    a(f"v_mov_b32 {v(r)}, 0")
                continue
            dma = []
            while issued[0] <= min(2 * t + 2, 15):
                dma += kv_dma("V", issued[0])
                vq.issue(("V", issued[0]), 3)
                issued[0] += 1
            pbuf = (t - 1) & 1
            pb = PBUF[pbuf] - PR
            a(f"ds_read_b32 {v(vAa)}, {v(aAl)} offset:{pbuf * 1024}")
            a(f"ds_read_b32 {v(vAb)}, {v(aAl)} offset:{pbuf * 1024 + 128}")
            for i in range(4):
                a(f"ds_read_b128 {v(YP + 4 * i, 4)}, {v(aPw)} offset:{pb + 1024 * i}")
            rd, mf = [], []
            for bk in range(2):
                u = ((2 * t - 2 + bk) % 5) * UNIT
                for s2 in range(2):
                    for Tt in range(6):
                        n = 12 * bk + 6 * s2 + Tt
                        f = YVF + 4 * (n % 8)
                        off = u + 16 * s2 * 384 + (Tt >> 1) * 128
                        rd.append("\n".join(
                            f"ds_read_b64_tr_b16 {v(f + 2 * jj, 2)}, {v(aM[2 * (Tt & 1) + jj])} offset:{off}"
                            for jj in range(2)))
                        acc = v(YO + 16 * Tt, 16)
                        mf.append(f"v_mfma_f32_32x32x16_bf16 {acc}, {v(f, 4)}, {v(YP + 8 * bk + 4 * s2, 4)}, {acc}")
            AH = 4
            for x in rd[:AH]:
                a(x)
            oregs = list(range(YO, YO + 96)) + [vLs]
            for x in rescale_block(oregs, vAa):
                a(x)
            for n in range(24):
                if n == 12:
                    for x in rescale_block(oregs, vAb):
                        a(x)
                a(mf[n])
                if n + AH < 24:
                    a(rd[n + AH])
                if n == 0:
                    for x in dma:
                        a(x)
                if 2 <= n % 12 < 10:
                    a(f"v_dot2c_f32_bf16 {v(vLs)}, {s(sONES)}, {v(YP + 8 * (n // 12) + n % 12 - 2)}")
            lab = a.newlabel("ye")
            a(f"s_lshr_b32 {s(sT0)}, {s(sW)}, 1")
            a(f"s_cmp_lg_u32 {s(sT0)}, {(t - 1) & 1}")
            a(f"s_cbranch_scc1 {lab}")
            unit_sel(2 * t - 2, sT0)
            for i in range(4):
                a(f"v_add_u32 {v(cE[i])}, {s(sT0)}, {v(aE[i])}")
            a(f"s_lshl_b32 {s(sT0)}, {s(sW)}, 10")
            a(f"s_add_u32 {s(sT0)}, {s(sT0)}, {PE}")
            a(f"v_add_u32 {T[0]}, {s(sT0)}, {v(aLin)}")
            a(f"s_lshl_b32 {s(sT0)}, {s(sW)}, 6")
            a(f"s_add_u32 {s(sT0)}, {s(sT0)}, {SMALL}")
            a(f"v_add_u32 {T[1]}, {s(sT0)}, {v(aAe)}")
            a(f"ds_read_b32 {v(vAeY)}, {T[1]} offset:{ALPHAE - SMALL}")
            a(f"ds_read_b128 {v(YPE, 4)}, {T[0]}")
            rd, mf = [], []
            for dt in range(12):
                f = YVF + 4 * (dt % 8)
                rd.append("\n".join(
                    f"ds_read_b64_tr_b16 {v(f + 2 * jj, 2)}, {v(cE[dt & 3])} offset:{16 * jj * 384 + (dt >> 2) * 128}"
                    for jj in range(2)))
                acc = v(YOE + 4 * dt, 4)
                mf.append(f"v_mfma_f32_16x16x32_bf16 {acc}, {v(f, 4)}, {v(YPE, 4)}, {acc}")
            AH = 6
            for x in rd[:AH]:
                a(x)
            for x in rescale_block(list(range(YOE, YOE + 48)) + [vLe], vAeY):
                a(x)
            for n in range(12):
                a(mf[n])
                if n + AH < 12:
                    a(rd[n + AH])
                if 2 <= n < 6:
                    a(f"v_dot2c_f32_bf16 {v(vLe)}, {s(sONES)}, {v(YPE + n - 2)}")
            a.label(lab)
            a("s_waitcnt lgkmcnt(0)")
        a("s_barrier")
        a(f"v_add_u32 {T[1]}, {SMALL}, {v(aAe)}")
        a(f"s_lshl_b32 {s(sT0)}, {s(sW)}, 6")
        a(f"v_add_u32 {T[2]}, {s(sT0)}, {T[1]}")
        for wp in range(4):
            a(f"ds_read_b32 {v(YP + wp)}, {T[1]} offset:{ME - SMALL + 64 * wp}")
        a(f"ds_read_b32 {v(YP + 4)}, {T[2]} offset:{ME - SMALL}")
        a(f"v_mov_b32 {T[3]}, {v(vLe)}")
        a(f"v_permlane32_swap_b32 {v(vLe)}, {T[3]}")
        a(f"v_add_f32 {v(vLe)}, {v(vLe)}, {T[3]}")
        a(f"v_mov_b32 {T[3]}, {v(vLe)}")
        a(f"v_permlane16_swap_b32 {v(vLe)}, {T[3]}")
        a(f"v_add_f32 {v(vLe)}, {v(vLe)}, {T[3]}")
        a(f"v_max3_f32 {v(YP)}, {v(YP)}, {v(YP + 1)}, {v(YP + 2)}")
        a(f"v_max_f32 {v(YP)}, {v(YP)}, {v(YP + 3)}")
        a(f"v_sub_f32 {v(YP)}, {v(YP + 4)}, {v(YP)}")
        a(f"v_mul_f32 {v(YP)}, {s(sC)}, {v(YP)}")
        a(f"v_exp_f32 {v(YP)}, {v(YP)}")
        a(f"s_mul_i32 {s(sT0)}, {s(sW)}, 12288")
        a(f"s_add_u32 {s(sT0)}, {s(sT0)}, {MERGE}")
        a(f"v_add_u32 {T[0]}, {s(sT0)}, {v(aLin)}")
        a(f"v_mul_f32 {v(vLe)}, {v(YP)}, {v(vLe)}")
        a(f"ds_write_b32 {T[2]}, {v(vLe)} offset:{LE - SMALL}")
        for dt in range(12):
            for e in range(4):
                r = YOE + 4 * dt + e
                a(f"v_mul_f32 {v(r)}, {v(YP)}, {v(r)}")
            a(f"ds_write_b128 {T[0]}, {v(YOE + 4 * dt, 4)} offset:{1024 * dt}")
        a("s_waitcnt lgkmcnt(0)")
        a("s_barrier")
        a(f"v_mov_b32 {T[3]}, {v(vLs)}")
        a(f"v_permlane32_swap_b32 {v(vLs)}, {T[3]}")
        a(f"v_add_f32 {v(vLs)}, {v(vLs)}, {T[3]}")
        a(f"v_rcp_f32 {v(vLs)}, {v(vLs)}")
        for fi in range(12):
            b0 = YO + 8 * fi
            for e in range(8):
                a(f"v_mul_f32 {v(b0 + e)}, {v(vLs)}, {v(b0 + e)}")
            d = YVF + 4 * (fi % 8)
            for e in range(4):
                a(f"v_cvt_pk_bf16_f32 {v(d + e)}, {v(b0 + 2 * e)}, {v(b0 + 2 * e + 1)}")
            if fi % 4 == 0 and fi:
                a(f"s_add_u32 {s(sOM)}, {s(sOM)}, 4096")
            a(f"buffer_store_dwordx4 {v(d, 4)}, {v(aLin)}, {s(SWS, 4)}, {s(sOM)} offen offset:{1024 * (fi % 4)}")
            vq.issue("st")
        a("s_barrier")

    for role in ("X", "Y"):
        if role == "Y":
            a.label(f"{K}_ysetup")
        role_setup(role)
        a.label(f"{K}_task{role}")
        task_setup()
        vq = VMQ()
        qp_phase(role, vq)
        if role == "X":
            att_x(vq)
        else:
            att_y(vq)
        a("s_waitcnt vmcnt(0)")
        a(f"s_add_u32 {s(sRND)}, {s(sRND)}, 1")
        a(f"s_cmp_lt_u32 {s(sRND)}, 2")
        a(f"s_cbranch_scc1 {K}_task{role}")
        a("s_endpgm")
        for rb in rare_blocks:
            for x in rb:
                a(x)
        rare_blocks.clear()
    a.label(f"{K}_end")
    a("s_endpgm")


def gen_k2(a, cfg):
    NST = 4
    SSZ = 40960
    WOB = 0
    OB = 16384
    SWO, SO, SPT = 8, 12, 16
    sBLK, sS, sMT, sNT, sWV, sT0, sT1, sT2 = 20, 21, 22, 23, 24, 25, 26, 27
    sWOFF, sWOFF2, sOOFF, sMW, sMO, sIT, sPO = 28, 29, 30, 31, 32, 33, 34
    sP = 64
    L = "v0"
    T = [f"v{i}" for i in range(1, 8)]
    pWo, pO = 8, [9, 10, 11]
    aA = [12, 13]
    aB = 14
    aLin = 15
    ACC = 16
    FA = 64
    FB = 80
    K = "k2"
    a.label("oproj_kernel")
    a("s_cmp_ge_u32 s2, 240")
    a(f"s_cbranch_scc1 {K}_end")
    a(f"s_load_dwordx2 {s(sP, 2)}, s[0:1], 32")
    a(f"s_load_dwordx2 {s(sP + 2, 2)}, s[0:1], 72")
    a(f"s_load_dwordx2 {s(sP + 4, 2)}, s[0:1], 96")
    c = LC(a)
    c.shr(T[0], 6, "v0")
    a(f"v_readfirstlane_b32 {s(sWV)}, {T[0]}")
    c.and_("v0", 63, "v0")
    c.set_s(s(sWV), np.arange(8))
    a(f"""
    s_bfe_u32 {s(sBLK)}, s2, 0x10002
    s_and_b32 {s(sS)}, s2, 3
    s_lshr_b32 {s(sT0)}, s2, 3
    s_mul_i32 {s(sNT)}, {s(sT0)}, 43
    s_lshr_b32 {s(sNT)}, {s(sNT)}, 8
    s_mul_i32 {s(sT1)}, {s(sNT)}, 6
    s_sub_u32 {s(sMT)}, {s(sT0)}, {s(sT1)}
    s_lshl_b32 {s(sMW)}, {s(sWV)}, 11
    s_mul_i32 {s(sMO)}, {s(sWV)}, 3072
    s_add_u32 {s(sMO)}, {s(sMO)}, {OB}
    """)
    r_, c_, h_, G1_ = (LANE >> 2) & 3, LANE & 3, LANE >> 5, (LANE >> 4) & 1
    c.shr(T[0], 4, L)
    c.shl(T[1], 2, T[0])
    c.and_(T[2], 15, L)
    c.xor(T[1], T[1], T[2])
    c.mul24(T[0], 1280, T[0])
    c.lshl_add(v(pWo), T[1], 4, T[0])
    c.check(v(pWo), (LANE >> 4) * 1280 + (((LANE & 15) ^ ((LANE >> 4) << 2)) << 4))
    c.shl(v(aLin), 4, L)
    for i in range(3):
        c.mov(T[0], s(sWV))
        c.mul24(T[0], 3, T[0])
        c.add(T[0], i, T[0])
        c.shr(T[1], 2, T[0])
        c.and_(T[2], 3, T[0])
        c.mul24(T[1], 384, T[1])
        c.add(T[1], T[1], T[2])
        c.add(T[1], (-i) & 0xFFFFFFFF if i else 0, T[1])
        c.lshl_add(v(pO[i]), T[1], 10, v(aLin))
        idx = 3 * WV + i
        c.check(v(pO[i]), ((idx >> 2) * 384 + (idx & 3) - i) * 1024 + LANE * 16)
    c.bfe(T[0], L, 2, 2)
    c.shr(T[1], 5, L)
    c.lshl_or(T[1], T[1], 3, T[0])
    c.mov(T[2], s(sWV))
    c.and_(T[2], 3, T[2])
    c.xor(T[2], T[0], T[2])
    c.bfe(T[3], L, 4, 1)
    c.lshl_or(T[3], T[2], 1, T[3])
    c.and_(T[4], 1, L)
    c.lshl_or(T[3], T[3], 1, T[4])
    c.bfe(T[4], L, 1, 1)
    c.shl(T[4], 3, T[4])
    c.lshl_add(T[3], T[3], 4, T[4])
    c.lshl_add(v(aA[0]), T[1], 8, T[3])
    c.add(v(aA[1]), 1024, v(aA[0]))
    for jj in range(2):
        rw = 8 * h_ + 4 * jj + r_
        ch = 4 * (WV & 3) + 2 * G1_ + (c_ & 1)
        c.check(v(aA[jj]), rw * 256 + ((ch ^ ((rw & 3) << 2)) << 4) + (c_ >> 1) * 8)
    c.mov(T[0], s(sWV))
    c.shr(T[0], 2, T[0])
    c.mul24(T[0], 3 * 4096, T[0])
    c.add(T[0], OB, T[0])
    c.add(v(aB), T[0], v(aLin))
    a("s_waitcnt lgkmcnt(0)")
    a(f"s_cmp_eq_u32 {s(sBLK)}, 0")
    a(f"s_cselect_b64 {s(sP, 2)}, {s(sP, 2)}, {s(sP + 2, 2)}")
    srd(a, SWO, sP, sP + 1, 6144 * 640 * 2)
    srd(a, SO, sP + 4, sP + 5, O_BYTES)
    a(f"s_add_u32 {s(sP + 4)}, {s(sP + 4)}, {PART_OFF}")
    a(f"s_addc_u32 {s(sP + 5)}, {s(sP + 5)}, 0")
    srd(a, SPT, sP + 4, sP + 5, PART_BYTES)
    a(f"""
    s_mul_i32 {s(sWOFF)}, {s(sS)}, 1536
    s_lshl_b32 {s(sT0)}, {s(sWV)}, 3
    s_add_u32 {s(sWOFF)}, {s(sWOFF)}, {s(sT0)}
    s_mul_i32 {s(sWOFF)}, {s(sWOFF)}, 1280
    s_lshl_b32 {s(sT0)}, {s(sNT)}, 8
    s_add_u32 {s(sWOFF)}, {s(sWOFF)}, {s(sT0)}
    s_add_u32 {s(sWOFF2)}, {s(sWOFF)}, {4 * 1280 - 1024}
    s_mul_i32 {s(sT0)}, {s(sBLK)}, 36
    s_mul_i32 {s(sT1)}, {s(sMT)}, 6
    s_add_u32 {s(sT0)}, {s(sT0)}, {s(sT1)}
    s_mul_i32 {s(sOOFF)}, {s(sT0)}, 384
    s_mul_i32 {s(sT1)}, {s(sS)}, 96
    s_add_u32 {s(sOOFF)}, {s(sOOFF)}, {s(sT1)}
    s_lshl_b32 {s(sOOFF)}, {s(sOOFF)}, 10
    s_mul_i32 {s(sT1)}, {s(sS)}, 72
    s_add_u32 {s(sT0)}, {s(sT0)}, {s(sT1)}
    s_lshr_b32 {s(sT1)}, {s(sWV)}, 2
    s_mul_i32 {s(sT1)}, {s(sT1)}, 3
    s_add_u32 {s(sT0)}, {s(sT0)}, {s(sT1)}
    s_mul_i32 {s(sT0)}, {s(sT0)}, 20
    s_lshl_b32 {s(sT1)}, {s(sNT)}, 2
    s_add_u32 {s(sT0)}, {s(sT0)}, {s(sT1)}
    s_and_b32 {s(sT1)}, {s(sWV)}, 3
    s_add_u32 {s(sT0)}, {s(sT0)}, {s(sT1)}
    s_lshl_b32 {s(sPO)}, {s(sT0)}, 12
    """)

    def dma(st):
        base = st * SSZ
        out = [f"s_add_u32 m0, {s(sMW)}, {base}",
               f"s_nop 0",
               f"buffer_load_dwordx4 {v(pWo)}, {s(SWO, 4)}, {s(sWOFF)} offen lds",
               f"buffer_load_dwordx4 {v(pWo)}, {s(SWO, 4)}, {s(sWOFF2)} offen offset:1024 lds",
               f"s_add_u32 m0, {s(sMO)}, {base}",
               f"s_add_u32 {s(sWOFF)}, {s(sWOFF)}, {64 * 1280}"]
        for i in range(3):
            off = f" offset:{1024 * i}" if i else ""
            out.append(f"buffer_load_dwordx4 {v(pO[i])}, {s(SO, 4)}, {s(sOOFF)} offen{off} lds")
        out += [f"s_add_u32 {s(sWOFF2)}, {s(sWOFF2)}, {64 * 1280}",
                f"s_add_u32 {s(sOOFF)}, {s(sOOFF)}, 4096"]
        return out

    NCH = 24
    for st in range(NST - 1):
        for x in dma(st):
            a(x)
    aA2, aB2 = [T[0], T[1]], T[2]
    a(f"v_add_u32 {aA2[0]}, {2 * SSZ}, {v(aA[0])}")
    a(f"v_add_u32 {aA2[1]}, {2 * SSZ}, {v(aA[1])}")
    a(f"v_add_u32 {aB2}, {2 * SSZ}, {v(aB)}")

    def reads(ch, kk):
        st = ch % NST
        hi = st >= 2
        base = (st - 2 if hi else st) * SSZ
        A = aA2 if hi else [v(aA[0]), v(aA[1])]
        B = aB2 if hi else v(aB)
        out = [f"ds_read_b64_tr_b16 {v(FA + 4 * kk + 2 * jj, 2)}, {A[jj]} offset:{base + kk * 4096}" for jj in range(2)]
        for i in range(3):
            out.append(f"ds_read_b128 {v(FB + 12 * kk + 4 * i, 4)}, {B} offset:{base + i * 4096 + kk * 1024}")
        return out

    def mfmas(ch, kk):
        out = []
        for i in range(3):
            acc = v(ACC + 16 * i, 16)
            cin = "0" if (ch == 0 and kk == 0) else acc
            out.append(f"v_mfma_f32_32x32x16_bf16 {acc}, {v(FA + 4 * kk, 4)}, {v(FB + 12 * kk + 4 * i, 4)}, {cin}")
        return out

    for ch in range(NCH):
        inflight = min(NST - 2, NCH - 1 - ch)
        a(f"s_waitcnt vmcnt({5 * inflight})")
        a("s_barrier")
        for x in reads(ch, 0):
            a(x)
        d = dma((ch + NST - 1) % NST) if ch + NST - 1 < NCH else []
        if ch > 0:
            m = mfmas(ch - 1, 3)
            a(m[0])
            for x in reads(ch, 1):
                a(x)
            a(m[1])
            for x in d:
                a(x)
            a(m[2])
        else:
            for x in reads(ch, 1) + d:
                a(x)
        for kk in range(3):
            m = mfmas(ch, kk)
            a(m[0])
            if kk + 2 < 4:
                for x in reads(ch, kk + 2):
                    a(x)
            a(m[1])
            a(m[2])
        a("s_waitcnt lgkmcnt(0)")
    for x in mfmas(NCH - 1, 3):
        a(x)
    for i in range(3):
        for r4 in range(4):
            a(f"buffer_store_dwordx4 {v(ACC + 16 * i + 4 * r4, 4)}, {v(aLin)}, {s(SPT, 4)}, {s(sPO)} offen offset:{1024 * r4}")
        a(f"s_add_u32 {s(sPO)}, {s(sPO)}, {20 * 4096}")
    a.label(f"{K}_end")
    a("s_endpgm")


def gen_k3(a, cfg):
    SPT, SOUT = 8, 12
    sP = 64
    K = "k3"
    a.label("reduce_kernel")
    a("s_cmp_ge_u32 s2, 360")
    a(f"s_cbranch_scc1 {K}_end")
    a(f"s_load_dwordx2 {s(sP, 2)}, s[0:1], 80")
    a(f"s_load_dwordx2 {s(sP + 2, 2)}, s[0:1], 96")
    a("""
    v_lshrrev_b32 v1, 6, v0
    v_readfirstlane_b32 s20, v1
    v_and_b32 v0, 63, v0
    s_lshl_b32 s21, s2, 2
    s_add_u32 s21, s21, s20
    """)
    a("""
    s_mul_i32 s22, s21, 3277
    s_lshr_b32 s22, s22, 16
    s_mul_i32 s23, s22, 20
    s_sub_u32 s23, s21, s23
    s_cmp_ge_u32 s22, 36
    s_cselect_b32 s24, 1, 0
    s_mul_i32 s25, s24, 36
    s_sub_u32 s25, s22, s25
    s_lshl_b32 s26, s21, 12
    v_lshlrev_b32 v2, 4, v0
    """)
    a("""
    s_mul_i32 s27, s25, 81920
    s_mul_i32 s28, s24, 1280
    s_add_u32 s27, s27, s28
    s_lshl_b32 s28, s23, 6
    s_add_u32 s27, s27, s28
    v_and_b32 v3, 31, v0
    v_mul_u32_u24 v3, 2560, v3
    v_lshrrev_b32 v4, 5, v0
    v_lshl_add_u32 v3, v4, 4, v3
    s_waitcnt lgkmcnt(0)
    """)
    srd(a, SOUT, sP, sP + 1, 8 * 144 * 1280 * 2)
    a(f"s_add_u32 {s(sP + 2)}, {s(sP + 2)}, {PART_OFF}")
    a(f"s_addc_u32 {s(sP + 3)}, {s(sP + 3)}, 0")
    srd(a, SPT, sP + 2, sP + 3, PART_BYTES)
    for p in range(4):
        for r4 in range(4):
            a(f"buffer_load_dwordx4 {v(8 + 16 * p + 4 * r4, 4)}, v2, {s(SPT, 4)}, s26 offen offset:{1024 * r4}")
        a(f"s_add_u32 s26, s26, {72 * 20 * 4096}")
    a("s_waitcnt vmcnt(8)")
    for e in range(16):
        a(f"v_add_f32 {v(8 + e)}, {v(8 + e)}, {v(24 + e)}")
    a("s_waitcnt vmcnt(0)")
    for e in range(16):
        a(f"v_add_f32 {v(40 + e)}, {v(40 + e)}, {v(56 + e)}")
    for e in range(16):
        a(f"v_add_f32 {v(8 + e)}, {v(8 + e)}, {v(40 + e)}")
    for e in range(8):
        a(f"v_cvt_pk_bf16_f32 {v(24 + e)}, {v(8 + 2 * e)}, {v(8 + 2 * e + 1)}")
    a(f"buffer_store_dwordx4 v[24:27], v3, {s(SOUT, 4)}, s27 offen")
    a(f"buffer_store_dwordx4 v[28:31], v3, {s(SOUT, 4)}, s27 offen offset:32")
    a.label(f"{K}_end")
    a("s_endpgm")


def descriptor(name, nv, ns=96):
    acc = (nv + 3) // 4 * 4
    return f""".p2align 6
.amdhsa_kernel {name}
  .amdhsa_next_free_vgpr {nv}
  .amdhsa_next_free_sgpr {ns}
  .amdhsa_accum_offset {acc}
  .amdhsa_group_segment_fixed_size 0
  .amdhsa_kernarg_size 104
  .amdhsa_user_sgpr_count 2
  .amdhsa_user_sgpr_kernarg_segment_ptr 1
  .amdhsa_system_sgpr_workgroup_id_x 1
.end_amdhsa_kernel
"""


def build(cfg):
    head = [
        "; Generated by gen/gen.py. Kernarg: 10 inputs (A_x,A_k,A_v,A_wq,A_wo,B_x,B_k,B_v,B_wq,B_wo), out, debug, ws",
        f"; @launch kernel=att_kernel grid=(256,1,1) block=(512,1,1) lds={LDS_K1}",
        "; @launch kernel=oproj_kernel grid=(240,1,1) block=(512,1,1) lds=163840",
        "; @launch kernel=reduce_kernel grid=(360,1,1) block=(256,1,1) lds=0",
        '.amdgcn_target "amdgcn-amd-amdhsa--gfx950"',
        ".text",
    ]
    body = []
    for name, fn in (("att_kernel", gen_k1), ("oproj_kernel", gen_k2), ("reduce_kernel", gen_k3)):
        a = Asm()
        a.uid = 1000 * (len(body) + 1)
        fn(a, cfg)
        a.insert_lgkm_waits()
        a.insert_nops()
        body.append(f".globl {name}\n.p2align 8\n.type {name},@function\n" + a.text())
    tail = ['.section .rodata,"a"\n', descriptor("att_kernel", 256), descriptor("oproj_kernel", 128),
            descriptor("reduce_kernel", 72)]
    return "\n".join(head) + "\n" + "".join(body) + "".join(tail)


if __name__ == "__main__":
    cfg = {}
    out = sys.argv[1] if len(sys.argv) > 1 else f"cdna_kernels/{NAME}.s"
    for kv in sys.argv[2:]:
        k, val = kv.split("=")
        cfg[k] = int(val) if val.lstrip("-").isdigit() else val
    open(out, "w").write(build(cfg))
    print("wrote", out)
```

```python
import re


def v(n, w=1):
    return f"v{n}" if w == 1 else f"v[{n}:{n + w - 1}]"


def s(n, w=1):
    return f"s{n}" if w == 1 else f"s[{n}:{n + w - 1}]"


_REG = re.compile(r"^-?(?:abs\()?([vsa])(?:(\d+)|\[(\d+):(\d+)\])\)?$")


def regs_of(tok):
    tok = tok.strip()
    if tok == "vcc":
        return {("s", 106), ("s", 107)}
    if tok == "m0":
        return {("s", 124)}
    if tok == "exec":
        return {("s", 126), ("s", 127)}
    m = _REG.match(tok)
    if not m:
        return set()
    f = m.group(1)
    if m.group(2) is not None:
        return {(f, int(m.group(2)))}
    return {(f, i) for i in range(int(m.group(3)), int(m.group(4)) + 1)}


TRANS = ("v_exp_f32", "v_log_f32", "v_rcp_f32", "v_rsq_f32", "v_sqrt_f32", "v_sin_f32", "v_cos_f32")


class Inst:
    __slots__ = ("text", "op", "kind", "defs", "uses", "passes", "srcc", "srcab", "target", "nops", "dsdst")

    def __init__(self, text):
        self.text = text
        body = text.split(";")[0].strip()
        parts = body.split(None, 1)
        self.op = op = parts[0]
        rest = parts[1] if len(parts) > 1 else ""
        ops, cur, depth = [], "", 0
        for ch in rest:
            if ch in "[(":
                depth += 1
            if ch in "])":
                depth -= 1
            if ch == "," and depth == 0:
                ops.append(cur.strip())
                cur = ""
            else:
                cur += ch
        if cur.strip():
            ops.append(cur.strip())
        mods = []
        if ops:
            sp = ops[-1].split()
            ops[-1] = sp[0]
            mods = sp[1:]
        self.defs, self.uses = set(), set()
        self.passes = 0
        self.srcc, self.srcab = set(), set()
        self.target = None
        self.nops = 1
        self.dsdst = None
        R = [regs_of(o) for o in ops]
        if op == "@need":
            self.kind = "pseudo"
            for r in R:
                self.uses |= r
            self.nops = 0
        elif op == "s_call_b64":
            self.kind = "salu"
            self.defs = R[0]
        elif op == "s_setpc_b64":
            self.kind = "salu"
            self.uses = R[0]
        elif op.startswith("v_mfma"):
            self.kind = "mfma"
            self.passes = 8 if "32x32x16" in op else 4
            self.defs = R[0]
            self.srcab = R[1] | R[2]
            self.srcc = R[3]
            self.uses = self.srcab | self.srcc
        elif op.startswith("ds_read"):
            self.kind = "ds"
            self.defs = R[0]
            self.dsdst = R[0]
            self.uses = R[1]
        elif op.startswith("ds_"):
            self.kind = "ds"
            for r in R:
                self.uses |= r
            if op in ("ds_bpermute_b32", "ds_permute_b32", "ds_swizzle_b32"):
                self.defs = R[0]
                self.dsdst = R[0]
                self.uses = set().union(*R[1:])
        elif op.startswith("buffer_") or op.startswith("global_"):
            self.kind = "vmem"
            if op in ("buffer_wbl2", "buffer_inv"):
                pass
            elif "lds" in mods or op.startswith("global_load_lds"):
                for r in R:
                    self.uses |= r
                self.uses |= {("s", 124)}
                self.kind = "dma"
            elif "_load" in op:
                self.defs = R[0]
                self.uses = set().union(*R[1:])
            elif "atomic" in op:
                for r in R:
                    self.uses |= r
                if "sc0" in mods:
                    self.defs = R[0]
            else:
                for r in R:
                    self.uses |= r
                if "x4" in op or "x3" in op:
                    self.kind = "wstore"
                    self.srcc = R[0] if op.startswith("buffer") else R[1]
        elif op.startswith("v_"):
            self.kind = "trans" if op in TRANS else "valu"
            if op.startswith("v_cmp"):
                self.defs = R[0]
                self.uses = set().union(*R[1:])
            elif op.startswith("v_permlane") and "swap" in op:
                self.kind = "perm"
                self.defs = R[0] | R[1]
                self.uses = R[0] | R[1]
            elif op.startswith("v_readfirstlane") or op.startswith("v_readlane"):
                self.kind = "rdlane"
                self.defs = R[0]
                self.uses = set().union(*R[1:])
            elif op.startswith("v_writelane"):
                self.defs = R[0]
                self.uses = set().union(*R)
            elif op in ("v_add_co_u32", "v_sub_co_u32", "v_addc_co_u32"):
                self.defs = R[0] | R[1]
                self.uses = set().union(*R[2:])
            else:
                self.defs = R[0]
                self.uses = set().union(*R[1:]) if len(R) > 1 else set()
                if op.startswith("v_fmac") or op.startswith("v_dot2c"):
                    self.uses |= R[0]
                if op == "v_cndmask_b32" and len(ops) == 3:
                    self.uses |= regs_of("vcc")
                if "dpp" in op:
                    self.kind = "dpp"
            if op.startswith("v_dot"):
                self.kind = "dot"
        elif op == "s_nop":
            self.kind = "nop"
            self.nops = int(ops[0], 0) + 1
        elif op == "s_waitcnt":
            self.kind = "wait"
        elif op in ("s_branch",) or op.startswith("s_cbranch"):
            self.kind = "branch"
            self.target = ops[0]
        elif op.startswith("s_load") or op.startswith("s_memtime") or op.startswith("s_memrealtime"):
            self.kind = "smem"
            self.defs = R[0]
            self.uses = set().union(*R[1:]) if len(R) > 1 else set()
        elif op.startswith("s_"):
            self.kind = "salu"
            if op.startswith("s_cmp") or op in ("s_barrier", "s_endpgm", "s_sleep", "s_setprio"):
                for r in R:
                    self.uses |= r
            else:
                if R:
                    self.defs = R[0]
                    self.uses = set().union(*R[1:]) if len(R) > 1 else set()
                if op in ("s_addk_i32", "s_mulk_i32"):
                    self.uses |= R[0]
                if "saveexec" in op:
                    self.defs |= regs_of("exec")
        else:
            raise ValueError("unknown instruction: " + text)


VALU_KINDS = ("valu", "trans", "perm", "rdlane", "dpp", "dot")


def need_wait(p, c):
    n = 0
    pv = p.kind in VALU_KINDS
    cv = c.kind in VALU_KINDS
    vdefs = {r for r in p.defs if r[0] in "va"}
    sdefs = {r for r in p.defs if r[0] == "s"}
    if pv:
        if c.kind == "mfma" and vdefs & c.uses:
            n = max(n, 3 if p.kind == "dot" else 2)
        if c.kind == "perm" and vdefs & c.uses:
            n = max(n, 2)
        if c.kind == "dpp" and vdefs & c.uses:
            n = max(n, 2)
        if c.kind == "rdlane" and vdefs & c.uses:
            n = max(n, 1)
        if p.kind == "trans" and cv and c.kind != "trans" and vdefs & (c.uses | c.defs):
            n = max(n, 1)
        if p.kind == "trans" and c.kind in ("ds", "vmem", "wstore", "dma") and vdefs & c.uses:
            n = max(n, 1)
        if p.kind == "dot" and c.op != p.op and vdefs & (c.uses | c.defs):
            n = max(n, 3)
        if p.kind == "dot" and c.op == p.op and vdefs & c.uses:
            pass
        if sdefs:
            if cv and sdefs & c.uses:
                n = max(n, 4 if c.kind == "rdlane" else 2)
            if c.kind in ("vmem", "wstore", "dma") and sdefs & c.uses:
                n = max(n, 5)
            if c.kind in ("salu", "branch", "smem") and sdefs & c.uses:
                n = max(n, 1)
            if sdefs & regs_of("exec") and c.kind == "mfma":
                n = max(n, 4)
    if p.kind == "mfma":
        big = p.passes == 8
        if c.kind == "mfma":
            if vdefs & c.srcab:
                n = max(n, 12 if big else 8)
            if vdefs & c.srcc:
                if not (c.srcc == p.defs and c.passes == p.passes):
                    n = max(n, 10 if big else 6)
            elif vdefs & c.defs:
                n = max(n, 12 if big else 8)
        elif cv or c.kind in ("ds", "vmem", "wstore", "dma"):
            if vdefs & (c.uses | c.defs):
                n = max(n, 12 if big else 8)
            if cv and p.srcc & c.defs:
                n = max(n, 7 if big else 3)
            if c.kind == "ds" and p.srcc & c.defs:
                n = max(n, 7 if big else 3)
    if p.kind == "wstore":
        if p.srcc & c.defs:
            n = max(n, 2)
    if p.kind == "salu" and ("s", 124) in p.defs and c.kind == "dma":
        n = max(n, 1)
    if p.kind == "salu" and p.defs & regs_of("exec") and False:
        pass
    return n


class Asm:
    def __init__(self):
        self.items = []
        self.uid = 0

    def __call__(self, text):
        for line in text.strip().split("\n"):
            line = line.strip()
            if not line:
                continue
            if line.startswith(";"):
                self.items.append(("raw", "    " + line))
            elif line.endswith(":"):
                self.items.append(("label", line[:-1]))
            elif line.startswith("."):
                self.items.append(("raw", line))
            else:
                self.items.append(Inst(line))

    def label(self, name):
        self.items.append(("label", name))

    def raw(self, text):
        self.items.append(("raw", text))

    def newlabel(self, base):
        self.uid += 1
        return f"{base}_{self.uid}"

    def insert_lgkm_waits(self):
        out = []
        fifo = []

        def need(regs):
            idx = -1
            for i, d in enumerate(fifo):
                if d is not None and d[1] & regs:
                    idx = i
            return idx

        for it in self.items:
            if not isinstance(it, Inst):
                if it[0] == "label" and not it[1].startswith(("K_", "KS_")):
                    pend = [d for d in fifo if d is not None]
                    if pend:
                        raise RuntimeError(f"outstanding lgkm reads at label {it[1]}: {pend}")
                    fifo = []
                out.append(it)
                continue
            if it.kind == "wait":
                m = re.search(r"lgkmcnt\((\d+)\)", it.text)
                if m:
                    n = int(m.group(1))
                    if any(d is not None and d[0] == "smem" for d in fifo):
                        if n == 0:
                            fifo = []
                    else:
                        fifo = fifo[len(fifo) - n:] if n else []
                out.append(it)
                continue
            regs = it.uses | it.defs
            idx = need(regs)
            if idx >= 0:
                if any(d is not None and d[0] == "smem" for d in fifo):
                    n = 0
                else:
                    n = min(len(fifo) - 1 - idx, 15)
                out.append(Inst(f"s_waitcnt lgkmcnt({n})"))
                fifo = fifo[len(fifo) - n:] if n else []
            if it.kind == "branch" and not it.target.startswith(("R_", "KS_")):
                pend = [d for d in fifo if d is not None]
                if pend:
                    raise RuntimeError(f"outstanding lgkm reads at branch {it.text}: {pend}")
            if it.kind == "pseudo":
                continue
            if it.kind == "ds":
                fifo.append(("ds", it.dsdst) if it.dsdst else None)
            elif it.kind == "smem":
                fifo.append(("smem", it.defs))
            out.append(it)
        self.items = out

    def insert_nops(self):
        out = []
        window = []

        def required(c, win):
            req = 0
            dist = 0
            for p in reversed(win):
                n = need_wait(p, c)
                if n > dist:
                    req = max(req, n - dist)
                dist += p.nops
                if dist > 20:
                    break
            return req

        for it in self.items:
            if not isinstance(it, Inst):
                out.append(it)
                continue
            r = required(it, window)
            while r > 0:
                k = min(r, 16)
                nop = Inst(f"s_nop {k - 1}")
                out.append(nop)
                window.append(nop)
                r -= k
            out.append(it)
            window.append(it)
            if it.op in ("s_endpgm", "s_setpc_b64") or (it.op == "s_branch" and not it.target.startswith("KS_")):
                window = []
            window = window[-24:]
        self.items = out
        labels = {}
        for i, it in enumerate(self.items):
            if not isinstance(it, Inst) and it[0] == "label":
                labels[it[1]] = i
        for i, it in enumerate(self.items):
            if isinstance(it, Inst) and it.kind == "branch":
                tail = []
                for x in reversed(self.items[: i + 1]):
                    if isinstance(x, Inst):
                        if x is not it and x.op in ("s_branch", "s_endpgm"):
                            break
                        tail.append(x)
                        if len(tail) >= 24:
                            break
                tail.reverse()
                win = list(tail)
                cnt = 0
                for x in self.items[labels[it.target]:]:
                    if isinstance(x, Inst):
                        r = required(x, win)
                        if r > 0:
                            raise RuntimeError(
                                f"hazard across branch '{it.text}' -> '{x.text}' needs {r} more wait states")
                        win.append(x)
                        cnt += x.nops
                        if cnt > 20 or x.op in ("s_branch", "s_endpgm"):
                            break

    def text(self):
        lines = []
        for it in self.items:
            if isinstance(it, Inst):
                lines.append("    " + it.text)
            elif it[0] == "label":
                lines.append(it[1] + ":")
            else:
                lines.append(it[1])
        return "\n".join(lines) + "\n"


def interleave(main, fill, lead=0):
    out = list(fill[:lead])
    rest = fill[lead:]
    n = len(main)
    k = 0
    for i, m in enumerate(main):
        out.append(m)
        upto = (len(rest) * (i + 1)) // n
        out.extend(rest[k:upto])
        k = upto
    out.extend(rest[k:])
    return out
```

```python
import math
import struct

import numpy as np

from asmlib import v, s
from lanecalc import mask_of, emit_mask


def f32(x):
    return struct.unpack("<I", struct.pack("<f", x))[0]


CSCALE = (192 ** -0.5) * math.log2(math.e)
TLAZY = 8.0

O_BYTES = 2 * 36 * 384 * 1024
PART_OFF = 32 * 1024 * 1024
PART_BYTES = 4 * 2 * 36 * 20 * 4096

LANE = np.arange(64).reshape(1, 64)
WV = np.arange(8).reshape(8, 1)
W4 = WV & 3


def srd(a, d, lo, hi, nbytes):
    a(f"s_mov_b32 {s(d)}, {s(lo)}")
    a(f"s_and_b32 {s(d + 1)}, {s(hi)}, 0xffff")
    a(f"s_mov_b32 {s(d + 2)}, {hex(nbytes)}")
    a(f"s_mov_b32 {s(d + 3)}, 0x20000")


def tr_addr(c, d, row, chunk, sub, base, t1, t2, t3):
    emit_mask(c, t3, row, t1, t2)
    c.xor(t3, chunk, t3)
    c.mul24(t1, 384, row)
    c.lshl_add(t3, t3, 4, t1)
    if sub is not None:
        c.lshl_add(t3, sub, 3, t3)
    c.add(d, base, t3)


def tr_ref(row, chunk, sub, base):
    return base + row * 384 + ((chunk ^ mask_of(row)) << 4) + sub * 8


class VMQ:
    def __init__(self):
        self.q = []

    def issue(self, tag, n=1):
        self.q += [tag] * n

    def wait_for(self, tags):
        last = -1
        for i, t in enumerate(self.q):
            if t in tags:
                last = i
        n = len(self.q) - 1 - last
        self.q = self.q[last + 1:]
        return n
```

```python
import numpy as np

from asmlib import v, s, interleave
from lanecalc import LC, mask_of, emit_mask
from common import *

UNIT = 12288
KR = 0
VR = 5 * UNIT
PR = 10 * UNIT
STG = VR
SW = 24576
XST = STG + 3 * SW
SX_ = 9216
PBUF = [PR, PR + 16384]
PE = PR + 32768
SMALL = PE + 4096
ALPHA = SMALL
ALPHAE = SMALL + 2048
LSUM = SMALL + 2304
LE = SMALL + 2816
QE = [XST, XST + 2 * SX_]
LDS_K1 = 163840
PEW = [0, 2]


def vunit(i):
    return (i + 2) % 5


def gen_k1(a, cfg):
    KVNT = " nt"
    WNT = " nt" if cfg.get("wnt", 0) else ""
    XNT = " nt" if cfg.get("xnt", 0) else ""
    ONT = " nt" if cfg.get("ont", 0) else ""
    TOUCH = cfg.get("touch", 1)
    SX, SWQ, SK, SV, SWS = 8, 12, 16, 20, 24
    sBLK, sB, sH, sHH, sWV, sW, sKV, sC = 28, 29, 30, 31, 32, 33, 34, 35
    sWOFF, sX0, sXE, sTCH, sT0, sT1, sT2 = 36, 37, 38, 39, 40, 41, 42
    sM3, sMW, sNC, sTC, sOM, sOE, sMX = 44, 45, 46, 47, 48, 49, 50
    sRET = 60
    sP = 64
    L = "v0"
    T = [f"v{i}" for i in range(1, 9)]
    pKV = [9, 10, 11]
    pW = [12, 13, 14]
    pX = 15
    aW = {(tp, jj): 16 + 2 * tp + jj for tp in range(2) for jj in range(2)}
    aXB = [20, 21]
    aWe = {(i, jj): 22 + 2 * i + jj for i in range(3) for jj in range(2)}
    aXe = 28
    aLin = 29
    aM = [30, 31, 32, 33]
    aE = [34, 35, 36, 37]
    aAl, aAe, aPw, aQE, aPe = 38, 39, 40, 41, 42
    vM, vNM, vTH, vAL, vL0, vL1 = 43, 44, 45, 46, 47, 48
    vMe, vNMe, vTHe, vALe, vLe = 49, 50, 51, 52, 53
    vt0, vt1 = 54, 55
    vTCH, vDUM = 43, 44
    QACC, QSA = 56, 236
    QA = {0: 164, 1: 192}
    QB = {0: 188, 1: 216}
    QAE, QBE = 220, 232
    XQ = [160, 208]
    XQE, XS, XSE, XKF, XP = 136, [56, 72], [88, 96], 104, [12, 20]
    YO, YOE, YVF, YP, YPE = 56, 152, 200, 232, 248
    vAa = [43, 44]
    vAeY = [45, 46]
    vLi, vLei = 47, 48

    K = "k1"
    a.label("att_kernel")
    a("s_cmp_ge_u32 s2, 256")
    a(f"s_cbranch_scc1 {K}_end")
    a(f"s_load_dwordx16 {s(sP, 16)}, s[0:1], 0")
    a(f"s_load_dwordx8 {s(sP + 16, 8)}, s[0:1], 64")
    a(f"s_load_dwordx2 {s(sP + 24, 2)}, s[0:1], 96")
    c = LC(a)
    c.shr(T[0], 6, "v0")
    a(f"v_readfirstlane_b32 {s(sWV)}, {T[0]}")
    c.and_("v0", 63, "v0")
    c.set_s(s(sWV), np.arange(8))
    a(f"s_and_b32 {s(sW)}, {s(sWV)}, 3")
    c.set_s(s(sW), np.arange(8) & 3)
    a(f"""
    s_bfe_u32 {s(sBLK)}, s2, 0x10002
    s_bfe_u32 {s(sB)}, s2, 0x30003
    s_and_b32 {s(sT0)}, s2, 3
    s_lshr_b32 {s(sHH)}, s2, 6
    s_lshl_b32 {s(sT0)}, {s(sT0)}, 2
    s_add_u32 {s(sH)}, {s(sT0)}, {s(sHH)}
    s_mov_b32 {s(sC)}, {hex(f32(CSCALE))}
    s_mov_b32 {s(sNC)}, {hex(f32(-CSCALE))}
    s_mov_b32 {s(sTC)}, {hex(f32(TLAZY / CSCALE))}
    s_mul_i32 {s(sM3)}, {s(sW)}, 3072
    s_mul_i32 {s(sMW)}, {s(sWV)}, 3072
    s_lshl_b32 {s(sMX)}, {s(sWV)}, 10
    """)
    c.set_s(s(sM3), (np.arange(8) & 3) * 3072)
    RR = WV >> 2
    a(f"""
    s_lshl_b32 {s(sT0)}, {s(sB)}, 5
    s_add_u32 {s(sT0)}, {s(sT0)}, {s(sH)}
    s_mul_i32 {s(sKV)}, {s(sT0)}, 196608
    s_lshr_b32 {s(sT0)}, {s(sWV)}, 2
    s_lshl_b32 {s(sT0)}, {s(sT0)}, 4
    s_add_u32 {s(sT0)}, {s(sT0)}, {s(sH)}
    s_mul_i32 {s(sWOFF)}, {s(sT0)}, 384
    s_and_b32 {s(sT0)}, {s(sB)}, 1
    s_mul_i32 {s(sT1)}, {s(sB)}, 144
    s_add_u32 {s(sT2)}, {s(sT0)}, {s(sWV)}
    s_lshl_b32 {s(sT2)}, {s(sT2)}, 4
    s_add_u32 {s(sT2)}, {s(sT2)}, {s(sT1)}
    s_mul_i32 {s(sX0)}, {s(sT2)}, 1280
    s_xor_b32 {s(sT2)}, {s(sT0)}, 1
    s_lshl_b32 {s(sT2)}, {s(sT2)}, 7
    s_add_u32 {s(sT2)}, {s(sT2)}, {s(sT1)}
    s_mul_i32 {s(sXE)}, {s(sT2)}, 1280
    s_mul_i32 {s(sT1)}, {s(sB)}, 9
    s_add_u32 {s(sT1)}, {s(sT1)}, {s(sT0)}
    s_lshr_b32 {s(sT1)}, {s(sT1)}, 1
    s_add_u32 {s(sT1)}, {s(sT1)}, {s(sW)}
    s_mul_i32 {s(sT2)}, {s(sBLK)}, 96
    s_mul_i32 {s(sOM)}, {s(sH)}, 3
    s_add_u32 {s(sT2)}, {s(sT2)}, {s(sOM)}
    s_mul_i32 {s(sT2)}, {s(sT2)}, 36
    s_add_u32 {s(sOM)}, {s(sT1)}, {s(sT2)}
    s_lshl_b32 {s(sOM)}, {s(sOM)}, 12
    s_lshr_b32 {s(sOE)}, {s(sB)}, 1
    s_mul_i32 {s(sOE)}, {s(sOE)}, 9
    s_add_u32 {s(sOE)}, {s(sOE)}, 4
    s_add_u32 {s(sOE)}, {s(sOE)}, {s(sT2)}
    s_lshl_b32 {s(sOE)}, {s(sOE)}, 12
    s_lshl_b32 {s(sT0)}, {s(sT0)}, 8
    s_add_u32 {s(sOE)}, {s(sOE)}, {s(sT0)}
    """)
    fr, fc, fh, fg, fG1 = "v46", "v47", "v48", "v49", "v50"
    c.bfe(fr, L, 2, 2)
    c.and_(fc, 3, L)
    c.shr(fh, 5, L)
    c.shr(fg, 4, L)
    c.bfe(fG1, L, 4, 1)
    r_, c_, h_, g_, G1_ = (LANE >> 2) & 3, LANE & 3, LANE >> 5, LANE >> 4, (LANE >> 4) & 1
    row, chk, sub = "v51", "v52", "v53"
    t1, t2, t3 = T[0], T[1], T[2]
    for j in range(3):
        c.add(T[3], 64 * j, L)
        c.shr(T[4], 3, T[3])
        c.mul24(T[4], 11, T[4])
        c.shr(T[4], 5, T[4])
        c.mul24(T[5], 24, T[4])
        c.sub(T[5], T[3], T[5])
        c.mov(T[6], s(sW))
        c.lshl_add(row, T[6], 3, T[4])
        emit_mask(c, t3, row, t1, t2)
        c.xor(T[6], L, t3)
        c.lshl_add(v(pKV[j]), T[6], 4, s(sM3))
        c.xor(T[5], T[5], t3)
        c.mul24(T[6], 12288, row)
        c.lshl_add(T[6], T[5], 4, T[6])
        c.add(v(pW[j]), (-1024 * j) & 0xFFFFFFFF if j else 0, T[6])
        p = 64 * j + LANE
        rw = 8 * W4 + p // 24
        c.check(v(pKV[j]), rw * 384 + (((p % 24) ^ mask_of(rw)) * 16) - 1024 * j)
        c.check(v(pW[j]), rw * 12288 + (((p % 24) ^ mask_of(rw)) * 16) - 1024 * j)
    c.sub(T[3], 0, fg)
    c.and_(T[3], 3, T[3])
    c.xor(T[3], fc, T[3])
    c.shr(T[4], 2, L)
    c.mul24(T[4], 1280, T[4])
    c.lshl_add(v(pX), T[3], 4, T[4])
    c.check(v(pX), (LANE >> 2) * 1280 + (((LANE & 3) ^ ((-(LANE >> 4)) & 3)) << 4))

    a("s_waitcnt lgkmcnt(0)")
    a(f"s_cmp_eq_u32 {s(sBLK)}, 0")
    for i in range(4):
        a(f"s_cselect_b64 {s(sP + 2 * i, 2)}, {s(sP + 2 * i, 2)}, {s(sP + 10 + 2 * i, 2)}")
    srd(a, SX, sP + 0, sP + 1, 8 * 144 * 640 * 2)
    srd(a, SK, sP + 2, sP + 3, 8 * 32 * 512 * 192 * 2)
    srd(a, SV, sP + 4, sP + 5, 8 * 32 * 512 * 192 * 2)
    srd(a, SWQ, sP + 6, sP + 7, 640 * 6144 * 2)
    srd(a, SWS, sP + 24, sP + 25, O_BYTES)
    a(f"s_cmp_ge_u32 {s(sWV)}, 4")
    a(f"s_cbranch_scc1 {K}_Y")

    rare_blocks = []

    def stamp(i, real=False):
        if not cfg.get("stamp"):
            return
        a(f"{'s_memrealtime' if real else 's_memtime'} s[90:91]")
        a("s_waitcnt lgkmcnt(0)")
        a(f"v_writelane_b32 v8, s90, {i}")

    def touch_setup(role):
        if role == "X":
            a(f"""
            v_cmp_le_u32 vcc, 24, {L}
            v_cndmask_b32 {T[0]}, 0, 1, vcc
            v_mul_u32_u24 {T[1]}, 24, {T[0]}
            v_sub_u32 {T[1]}, {L}, {T[1]}
            v_mul_u32_u24 {T[2]}, 11, {T[1]}
            v_lshrrev_b32 {T[2]}, 5, {T[2]}
            v_mul_u32_u24 {T[3]}, 3, {T[2]}
            v_sub_u32 {T[3]}, {T[1]}, {T[3]}
            v_mul_u32_u24 {T[2]}, {8 * 12288}, {T[2]}
            v_mul_u32_u24 {T[0]}, 6144, {T[0]}
            v_lshl_add_u32 {T[2]}, {T[3]}, 7, {T[2]}
            v_add_u32 {T[2]}, {T[0]}, {T[2]}
            v_mov_b32 {T[3]}, 0x7fffffff
            v_cmp_gt_u32 vcc, 48, {L}
            v_cndmask_b32 {v(vTCH)}, {T[3]}, {T[2]}, vcc
            s_lshl_b32 {s(sT0)}, {s(sW)}, 6
            s_add_u32 {s(sT0)}, {s(sT0)}, {s(sB)}
            s_mul_i32 {s(sTCH)}, {s(sT0)}, 12288
            s_add_u32 {s(sTCH)}, {s(sTCH)}, {s(sWOFF)}
            """)
        else:
            a(f"""
            v_mul_u32_u24 {T[2]}, 1280, {L}
            v_mov_b32 {T[3]}, 0x7fffffff
            v_cmp_gt_u32 vcc, 36, {L}
            v_cndmask_b32 {v(vTCH)}, {T[3]}, {T[2]}, vcc
            s_mul_i32 {s(sT0)}, {s(sB)}, 144
            s_mul_i32 {s(sT1)}, {s(sHH)}, 36
            s_add_u32 {s(sT0)}, {s(sT0)}, {s(sT1)}
            s_mul_i32 {s(sTCH)}, {s(sT0)}, 1280
            s_lshl_b32 {s(sT0)}, {s(sW)}, 7
            s_add_u32 {s(sTCH)}, {s(sTCH)}, {s(sT0)}
            """)

    def touch(role, vq, p0, n):
        lab = a.newlabel("KS_t")
        stride = 64 * 12288 if role == "X" else 128
        sr, nt = (SWQ, WNT) if role == "X" else (SX, XNT)
        return ["\n".join([f"s_add_u32 {s(sT0)}, {s(sTCH)}, {p0 * stride}",
                           f"s_cmp_ge_u32 {s(sW)}, {n}",
                           f"s_cbranch_scc1 {lab}",
                           f"buffer_load_dword {v(vDUM)}, {v(vTCH)}, {s(sr, 4)}, {s(sT0)} offen{nt}",
                           f"{lab}:"])]

    def addr_setup(role):
        cc = LC(a)
        cc.val = dict(c.val)
        r = 0 if role == "X" else 1
        waves = [0, 1, 2, 3] if role == "X" else [4, 5, 6, 7]
        wb = STG + r * 12288
        cc.and_(T[3], 1, fc)
        cc.lshl_or(T[3], fG1, 1, T[3])
        cc.shr(sub, 1, fc)
        for tp in range(2):
            for jj in range(2):
                cc.lshl_or(row, fh, 3, fr)
                if jj:
                    cc.add(row, 4, row)
                cc.or_(chk, 4 * tp, T[3])
                tr_addr(cc, v(aW[tp, jj]), row, chk, sub, wb, t1, t2, t3)
                cc.check(v(aW[tp, jj]), tr_ref(8 * h_ + 4 * jj + r_, 4 * tp + 2 * G1_ + (c_ & 1), c_ >> 1, wb))
        cc.bfe(T[4], L, 2, 2)
        cc.sub(T[4], 0, T[4])
        cc.and_(T[4], 3, T[4])
        cc.and_(T[5], 31, L)
        cc.mov(T[6], s(sW))
        cc.lshl_add(T[5], T[6], 5, T[5])
        cc.shl(T[5], 6, T[5])
        for s2 in range(2):
            cc.or_(T[6], 2 * s2, fh)
            cc.xor(T[6], T[4], T[6])
            cc.lshl_add(T[6], T[6], 4, T[5])
            cc.add(v(aXB[s2]), XST, T[6])
            q = LANE & 31
            cc.check(v(aXB[s2]), XST + (32 * W4 + q) * 64 + (((2 * s2 + h_) ^ ((-(q >> 2)) & 3)) << 4))
        cc.xor(T[6], T[4], fg)
        cc.and_(T[5], 15, L)
        cc.shl(T[5], 6, T[5])
        cc.lshl_add(T[6], T[6], 4, T[5])
        cc.add(v(aXe), XST + 8192, T[6])
        q16 = LANE & 15
        cc.check(v(aXe), XST + 8192 + q16 * 64 + ((g_ ^ ((-(q16 >> 2)) & 3)) << 4))
        cc.and_(sub, 1, fc)
        for i in range(3):
            cc.mov(T[4], s(sW))
            cc.mul24(T[4], 6, T[4])
            cc.shr(T[5], 1, fc)
            cc.add(T[4], T[4], T[5])
            cc.add(chk, 2 * i, T[4])
            for jj in range(2):
                cc.lshl_or(row, fg, 3, fr)
                if jj:
                    cc.add(row, 4, row)
                tr_addr(cc, v(aWe[i, jj]), row, chk, sub, wb, t1, t2, t3)
                dt = 3 * W4 + i
                cc.check(v(aWe[i, jj]), tr_ref(8 * g_ + 4 * jj + r_, 2 * dt + (c_ >> 1), c_ & 1, wb), waves)
        cc.shl(v(aLin), 4, L)
        cc.and_(T[5], 31, L)
        cc.shl(T[5], 2, T[5])
        cc.mov(T[6], s(sW))
        cc.lshl_add(T[5], T[6], 8, T[5])
        cc.add(v(aAl), ALPHA, T[5])
        cc.and_(T[5], 15, L)
        cc.shl(T[5], 2, T[5])
        cc.add(v(aAe), SMALL, T[5])
        cc.lshl_add(T[5], T[6], 12, v(aLin))
        cc.add(v(aPw), PR, T[5])
        cc.add(v(aPe), PE, v(aLin))
        cc.and_(T[5], 15, L)
        cc.mul24(v(aQE), 384, T[5])
        if role == "X":
            cc.and_(row, 31, L)
            for i in range(4):
                cc.or_(chk, 2 * i, fh)
                tr_addr(cc, v(aM[i]), row, chk, None, KR, t1, t2, t3)
                cc.check(v(aM[i]), tr_ref(LANE & 31, 2 * i + h_, 0, KR))
            cc.and_(row, 15, L)
            for p in range(2):
                cc.or_(chk, 4 * p, fg)
                tr_addr(cc, v(aE[p]), row, chk, None, KR, t1, t2, t3)
                cc.check(v(aE[p]), tr_ref(LANE & 15, 4 * p + g_, 0, KR))
        else:
            cc.and_(T[3], 1, fc)
            cc.lshl_or(T[3], fG1, 1, T[3])
            cc.shr(sub, 1, fc)
            for tp in range(2):
                for jj in range(2):
                    cc.lshl_or(row, fh, 2, fr)
                    if jj:
                        cc.add(row, 8, row)
                    cc.or_(chk, 4 * tp, T[3])
                    tr_addr(cc, v(aM[2 * tp + jj]), row, chk, sub, VR, t1, t2, t3)
                    cc.check(v(aM[2 * tp + jj]),
                             tr_ref(8 * jj + 4 * h_ + r_, 4 * tp + 2 * G1_ + (c_ & 1), c_ >> 1, VR))
            cc.and_(sub, 1, fc)
            cc.lshl_or(row, fg, 2, fr)
            for i in range(4):
                cc.shr(chk, 1, fc)
                cc.or_(chk, 2 * i, chk)
                tr_addr(cc, v(aE[i]), row, chk, sub, VR, t1, t2, t3)
                cc.check(v(aE[i]), tr_ref(4 * g_ + r_, 2 * i + (c_ >> 1), c_ & 1, VR))

    def kv_dma(kind, gi, vq):
        unit = gi % 5 if kind == "K" else vunit(gi)
        base = (KR if kind == "K" else VR) + unit * UNIT
        sr = SK if kind == "K" else SV
        goff = (gi >> 4) * 16 * 196608 + (gi & 15) * UNIT
        out = [f"s_add_u32 m0, {s(sM3)}, {base}",
               f"s_add_u32 {s(sT0)}, {s(sKV)}, {goff}"]
        for j in range(3):
            off = f" offset:{1024 * j}" if j else ""
            out.append(f"buffer_load_dwordx4 {v(pKV[j])}, {s(sr, 4)}, {s(sT0)} offen{off}{KVNT} lds")
        vq.issue((kind, gi), 3)
        return out

    def stage_dma(k, vq):
        st = STG + (k % 3) * SW
        sx = XST + (k % 3) * SX_
        lab = a.newlabel("KS_skip")
        out = [f"s_cmp_lg_u32 {s(sWV)}, {k % 8}",
               f"s_mov_b32 m0, {sx + 8192}",
               f"s_cbranch_scc1 {lab}",
               f"buffer_load_dwordx4 {v(pX)}, {s(SX, 4)}, {s(sXE)} offen{XNT} lds",
               f"{lab}:",
               f"s_add_u32 m0, {s(sMW)}, {st}",
               f"s_add_u32 {s(sXE)}, {s(sXE)}, 64"]
        out = ["\n".join(out[:5])] + out[5:]
        for j in range(3):
            off = f" offset:{1024 * j}" if j else ""
            out.append(f"buffer_load_dwordx4 {v(pW[j])}, {s(SWQ, 4)}, {s(sWOFF)} offen{off}{WNT} lds")
        out += [f"s_add_u32 m0, {s(sMX)}, {sx}",
                f"s_add_u32 {s(sWOFF)}, {s(sWOFF)}, {32 * 12288}",
                f"buffer_load_dwordx4 {v(pX)}, {s(SX, 4)}, {s(sX0)} offen{XNT} lds",
                f"s_add_u32 {s(sX0)}, {s(sX0)}, 64"]
        vq.issue(("S", k), 4)
        return out

    KPRE = {9: [0, 1], 12: [2, 3], 15: [4]}
    TCH_AT = {0: (2, 3), 3: (5, 3), 6: (8, 2)}

    def qp_phase(role, vq):
        def rdA(k, s2, Tt):
            return [f"ds_read_b64_tr_b16 {v(QA[s2] + 4 * Tt + 2 * jj, 2)}, {v(aW[Tt & 1, jj])} "
                    f"offset:{(k % 3) * SW + 16 * s2 * 384 + (Tt >> 1) * 128}" for jj in range(2)]

        def rdB(k, s2):
            return [f"ds_read_b128 {v(QB[s2], 4)}, {v(aXB[s2])} offset:{(k % 3) * SX_}"]

        def rdAe(k, i):
            return [f"ds_read_b64_tr_b16 {v(QAE + 4 * i + 2 * jj, 2)}, {v(aWe[i, jj])} "
                    f"offset:{(k % 3) * SW}" for jj in range(2)]

        def rdBe(k):
            return [f"ds_read_b128 {v(QBE, 4)}, {v(aXe)} offset:{(k % 3) * SX_}"]

        def big(k, s2, Tt):
            acc = v(QACC + 16 * Tt, 16)
            cin = "0" if (k == 0 and s2 == 0) else acc
            return f"v_mfma_f32_32x32x16_bf16 {acc}, {v(QA[s2] + 4 * Tt, 4)}, {v(QB[s2], 4)}, {cin}"

        def small(k, i):
            acc = v(QSA + 4 * i, 4)
            cin = "0" if k == 0 else acc
            return f"v_mfma_f32_16x16x32_bf16 {acc}, {v(QAE + 4 * i, 4)}, {v(QBE, 4)}, {cin}"

        ALT = {0: {4: QA[1] + 16, 5: QA[1] + 20, "B": QB[1]}, 1: {4: 152, 5: 156, "B": 160}}

        def regA(k, s2, Tt):
            return ALT[k & 1][Tt] if (s2 == 1 and Tt >= 4) else QA[s2] + 4 * Tt

        def regB(k, s2):
            return ALT[k & 1]["B"] if s2 == 1 else QB[0]

        def rdA2(k, s2, Tt):
            return [f"ds_read_b64_tr_b16 {v(regA(k, s2, Tt) + 2 * jj, 2)}, {v(aW[Tt & 1, jj])} "
                    f"offset:{(k % 3) * SW + 16 * s2 * 384 + (Tt >> 1) * 128}" for jj in range(2)]

        def rdB2(k, s2):
            return [f"ds_read_b128 {v(regB(k, s2), 4)}, {v(aXB[s2])} offset:{(k % 3) * SX_}"]

        def big2(k, s2, Tt):
            acc = v(QACC + 16 * Tt, 16)
            cin = "0" if (k == 0 and s2 == 0) else acc
            return f"v_mfma_f32_32x32x16_bf16 {acc}, {v(regA(k, s2, Tt), 4)}, {v(regB(k, s2), 4)}, {cin}"

        for k in range(21):
            if k < 20:
                a(f"s_waitcnt vmcnt({vq.wait_for({('S', k)})})")
            a("s_barrier")
            if k in (0, 1, 5, 10, 15):
                stamp(1 + (0, 1, 5, 10, 15).index(k))
            dma = stage_dma(k + 2, vq) if k + 2 < 20 else []
            if TOUCH and k in TCH_AT:
                dma += touch(role, vq, *TCH_AT[k])
            if role == "X":
                for gi in KPRE.get(k, []):
                    dma += kv_dma("K", gi, vq)
            seq = []
            for i in range(3):
                seq.append((small(k - 1, i), rdAe(k, i) + (rdBe(k) if i == 2 else [])))
            early = rdA2(k, 1, 4) + rdA2(k, 1, 5) + rdB2(k, 1)
            for Tt in range(6):
                seq.append((big2(k - 1, 0, Tt), rdA2(k, 0, Tt) + (rdB2(k, 0) if Tt == 5 else early[Tt:Tt + 1])))
            for Tt in range(6):
                seq.append((big2(k - 1, 1, Tt), rdA2(k, 1, Tt) if Tt < 4 else []))
            if role == "Y":
                for x in dma:
                    a(x)
            for m, rf in seq:
                if k:
                    a(m)
                if k < 20:
                    for x in rf:
                        a(x)
            if role == "X":
                for x in dma:
                    a(x)
            if k < 20:
                a("s_waitcnt lgkmcnt(0)")
        r = 0 if role == "X" else 1
        a(f"v_lshrrev_b32 {T[0]}, 4, {L}")
        a(f"v_lshl_add_u32 {T[0]}, {T[0]}, 3, {v(aQE)}")
        a(f"s_mul_i32 {s(sT0)}, {s(sW)}, 96")
        a(f"s_add_u32 {s(sT0)}, {s(sT0)}, {QE[r]}")
        a(f"v_add_u32 {T[0]}, {s(sT0)}, {T[0]}")
        qh_addr(T[1])
        dst = XQ[0] if role == "X" else 160
        for Tt in range(6):
            for e in range(8):
                a(f"v_cvt_pk_bf16_f32 {v(dst + 8 * Tt + e)}, {v(QACC + 16 * Tt + 2 * e)}, {v(QACC + 16 * Tt + 2 * e + 1)}")
            if role == "Y":
                for hf in range(2):
                    a(f"ds_write_b128 {T[1]}, {v(dst + 8 * Tt + 4 * hf, 4)} offset:{(2 * Tt + hf) * 1024}")
        for i in range(3):
            a(f"v_cvt_pk_bf16_f32 {v(QSA + 4 * i)}, {v(QSA + 4 * i)}, {v(QSA + 4 * i + 1)}")
            a(f"v_cvt_pk_bf16_f32 {v(QSA + 4 * i + 1)}, {v(QSA + 4 * i + 2)}, {v(QSA + 4 * i + 3)}")
            a(f"ds_write_b64 {T[0]}, {v(QSA + 4 * i, 2)} offset:{32 * i}")
        a("s_waitcnt lgkmcnt(0)")
        stamp(6)
        a("s_barrier")

    def qh_addr(dst):
        a(f"s_and_b32 {s(sT0)}, {s(sW)}, 1")
        a(f"s_mul_i32 {s(sT0)}, {s(sT0)}, 12288")
        a(f"s_lshr_b32 {s(sT1)}, {s(sW)}, 1")
        a(f"s_mul_i32 {s(sT1)}, {s(sT1)}, {2 * SW}")
        a(f"s_add_u32 {s(sT0)}, {s(sT0)}, {s(sT1)}")
        a(f"s_add_u32 {s(sT0)}, {s(sT0)}, {STG}")
        a(f"v_add_u32 {dst}, {s(sT0)}, {v(aLin)}")

    def softmax(S, n, P, st, ls, waddr, aaddr, woff, aoff, small):
        M_, NM_, TH_, AL_ = st
        lab = a.newlabel("sm")
        out = []
        t = v(vt0)
        out.append(f"v_max3_f32 {t}, {v(S)}, {v(S + 1)}, {v(S + 2)}")
        i = 3
        while i + 1 < n:
            out.append(f"v_max3_f32 {t}, {t}, {v(S + i)}, {v(S + i + 1)}")
            i += 2
        out.append(f"v_max_f32 {t}, {t}, {v(S + n - 1)}")
        out.append(f"v_mov_b32 {v(AL_)}, 1.0")
        out.append(f"v_cmp_gt_f32 vcc, {t}, {v(TH_)}")
        out.append(f"s_cbranch_vccnz R_{lab}\nK_{lab}:")
        out.append(f"ds_write_b32 {v(aaddr)}, {v(AL_)} offset:{aoff}")

        def post(q):
            o = []
            for e in range(2):
                r = S + 4 * q + 2 * e
                o.append(f"v_cvt_pk_bf16_f32 {v(P + 2 * q + e)}, {v(r)}, {v(r + 1)}")
            for e in range(4):
                lr = ls[e % len(ls)]
                o.append(f"v_add_f32 {v(lr)}, {v(lr)}, {v(S + 4 * q + e)}")
            return o

        for q in range(n // 4):
            for e in range(4):
                r = S + 4 * q + e
                out.append(f"v_fma_f32 {v(r)}, {v(r)}, {s(sC)}, {v(NM_)}")
            for e in range(4):
                r = S + 4 * q + e
                out.append(f"v_exp_f32 {v(r)}, {v(r)}")
            if q > 0:
                out += post(q - 1)
            if q == 2:
                out.append(f"ds_write_b128 {v(waddr)}, {v(P, 4)} offset:{woff}")
        pl = post(n // 4 - 1)
        out += pl[:2]
        if n == 16:
            out.append(f"ds_write_b128 {v(waddr)}, {v(P + 4, 4)} offset:{woff + 1024}")
        else:
            out.append(f"ds_write_b128 {v(waddr)}, {v(P, 4)} offset:{woff}")
        out += pl[2:]
        rare_blocks.append([f"R_{lab}:", f"s_call_b64 {s(sRET, 2)}, {K}_smrare{'e' if small else ''}",
                            f"s_branch K_{lab}"])
        return out

    def sm_rare(small):
        M_, NM_, TH_, AL_ = (vMe, vNMe, vTHe, vALe) if small else (vM, vNM, vTH, vAL)
        ls = [vLe] if small else [vL0, vL1]
        t, t2 = v(vt0), v(vt1)
        rb = [f"{K}_smrare{'e' if small else ''}:",
              f"v_mov_b32 {t2}, {t}",
              f"v_permlane32_swap_b32 {t}, {t2}",
              f"v_max_f32 {t}, {t}, {t2}"]
        if small:
            rb += [f"v_mov_b32 {t2}, {t}",
                   f"v_permlane16_swap_b32 {t}, {t2}",
                   f"v_max_f32 {t}, {t}, {t2}"]
        rb += [f"v_max_f32 {t}, {t}, {v(M_)}",
               f"v_sub_f32 {t2}, {v(M_)}, {t}",
               f"v_mul_f32 {t2}, {s(sC)}, {t2}",
               f"v_exp_f32 {v(AL_)}, {t2}",
               f"v_mov_b32 {v(M_)}, {t}",
               f"v_mul_f32 {v(NM_)}, {s(sNC)}, {t}",
               f"v_add_f32 {v(TH_)}, {s(sTC)}, {t}"]
        for lr in ls:
            rb.append(f"v_mul_f32 {v(lr)}, {v(AL_)}, {v(lr)}")
        rb.append(f"s_setpc_b64 {s(sRET, 2)}")
        return rb

    def att_x(vq):
        qh_addr(T[1])
        for f in range(12):
            a(f"ds_read_b128 {v(XQ[1] + 4 * f, 4)}, {T[1]} offset:{f * 1024}")
        a(f"s_cmp_eq_u32 {s(sW)}, {PEW[1]}")
        a(f"s_cselect_b32 {s(sT0)}, 1, 0")
        a(f"s_mul_i32 {s(sT0)}, {s(sT0)}, {QE[1] - QE[0]}")
        a(f"s_add_u32 {s(sT0)}, {s(sT0)}, {QE[0]}")
        a(f"v_lshrrev_b32 {T[0]}, 4, {L}")
        a(f"v_lshl_add_u32 {T[0]}, {T[0]}, 4, {v(aQE)}")
        a(f"v_add_u32 {T[0]}, {s(sT0)}, {T[0]}")
        for sp in range(6):
            a(f"ds_read_b128 {v(XQE + 4 * sp, 4)}, {T[0]} offset:{64 * sp}")
        a("s_waitcnt lgkmcnt(0)")
        issued = 5
        for n in range(17):
            task, t = n >> 3, n & 7
            need = {("K", 2 * n), ("K", 2 * n + 1)}
            if any(q in need for q in vq.q):
                a(f"s_waitcnt vmcnt({vq.wait_for(need)})")
            a("s_barrier")
            stamp(8 + 2 * n)
            if n == 16:
                break
            dma = []
            while issued <= min(2 * n + 4, 31):
                dma += kv_dma("K", issued, vq)
                issued += 1
            init = []
            if t == 0:
                for r in (vM, vTH, vMe, vTHe):
                    init.append(f"v_mov_b32 {v(r)}, 0xff800000")
                for r in (vL0, vL1, vLe):
                    init.append(f"v_mov_b32 {v(r)}, 0")
            rd, mf = [], []
            for bk in range(2):
                u = ((2 * n + bk) % 5) * UNIT
                for sx in range(12):
                    i = 12 * bk + sx
                    f = XKF + 4 * (i % 8)
                    rd.append(f"ds_read_b128 {v(f, 4)}, {v(aM[sx & 3])} offset:{u + (sx >> 2) * 128}")
                    acc = v(XS[bk], 16)
                    m = f"v_mfma_f32_32x32x16_bf16 {acc}, {v(f, 4)}, {v(XQ[task] + 4 * sx, 4)}, {'0' if sx == 0 else acc}"
                    if i % 2 == 0:
                        m = f"@need {v(XKF + 4 * ((i + 1) % 8), 4)}\n" + m
                    mf.append(m)
            AH = 6
            for x in rd[:AH] + init:
                a(x)
            for i in range(14):
                a(mf[i])
                if i + AH < 24:
                    a(rd[i + AH])
            pb = PBUF[n & 1] - PR
            st = (vM, vNM, vTH, vAL)
            smA = softmax(XS[0], 16, XP[0], st, [vL0, vL1], aPw, aAl, pb, (n & 1) * 1024, False)
            main = []
            for i in range(14, 24):
                item = mf[i]
                if i + AH < 24:
                    item += "\n" + rd[i + AH]
                main.append(item)
            for x in interleave(main, smA):
                a(x)
            smB = softmax(XS[1], 16, XP[1], st, [vL0, vL1], aPw, aAl, pb + 2048, (n & 1) * 1024 + 128, False)
            labx, labj = a.newlabel("xe"), a.newlabel("xj")
            a(f"s_cmp_eq_u32 {s(sW)}, {PEW[task]}")
            a(f"s_cbranch_scc1 {labx}")
            for x in smB:
                a(x)
            a(f"s_branch {labj}")
            a.label(labx)
            smB = softmax(XS[1], 16, XP[1], st, [vL0, vL1], aPw, aAl, pb + 2048, (n & 1) * 1024 + 128, False)
            rd, mf = [], []
            for bk in range(2):
                u = ((2 * n + bk) % 5) * UNIT
                for sp in range(6):
                    for kt in range(2):
                        i = 12 * bk + 2 * sp + kt
                        f = XKF + 4 * (i % 8)
                        rd.append(f"ds_read_b128 {v(f, 4)}, {v(aE[sp & 1])} offset:{u + 16 * kt * 384 + (sp >> 1) * 128}")
                        acc = v(XSE[bk] + 4 * kt, 4)
                        m = f"v_mfma_f32_16x16x32_bf16 {acc}, {v(f, 4)}, {v(XQE + 4 * sp, 4)}, {'0' if sp == 0 else acc}"
                        if i % 2 == 0:
                            m = f"@need {v(XKF + 4 * ((i + 1) % 8), 4)}\n" + m
                        mf.append(m)
            for x in rd[:AH]:
                a(x)
            main = []
            for i in range(24):
                item = mf[i]
                if i + AH < 24:
                    item += "\n" + rd[i + AH]
                main.append(item)
            for x in interleave(main, smB):
                a(x)
            ste = (vMe, vNMe, vTHe, vALe)
            for bk in range(2):
                for x in softmax(XSE[bk], 8, XP[0] + 4 * bk, ste, [vLe], aPe, aAe, (n & 1) * 2048 + bk * 1024,
                                 ALPHAE - SMALL + (n & 1) * 128 + bk * 64, True):
                    a(x)
            if t == 7:
                a(f"v_mov_b32 {T[3]}, {v(vLe)}")
                a(f"v_permlane32_swap_b32 {v(vLe)}, {T[3]}")
                a(f"v_add_f32 {v(vLe)}, {v(vLe)}, {T[3]}")
                a(f"v_mov_b32 {T[3]}, {v(vLe)}")
                a(f"v_permlane16_swap_b32 {v(vLe)}, {T[3]}")
                a(f"v_add_f32 {v(vLe)}, {v(vLe)}, {T[3]}")
                a(f"v_rcp_f32 {v(vLe)}, {v(vLe)}")
                a(f"ds_write_b32 {v(aAe)}, {v(vLe)} offset:{LE - SMALL}")
            a.label(labj)
            if t == 7:
                a(f"v_add_f32 {v(vL0)}, {v(vL0)}, {v(vL1)}")
                a(f"v_mov_b32 {T[3]}, {v(vL0)}")
                a(f"v_permlane32_swap_b32 {v(vL0)}, {T[3]}")
                a(f"v_add_f32 {v(vL0)}, {v(vL0)}, {T[3]}")
                a(f"v_rcp_f32 {v(vL0)}, {v(vL0)}")
                a(f"s_lshl_b32 {s(sT0)}, {s(sW)}, 7")
                a(f"v_subrev_u32 {T[3]}, {s(sT0)}, {v(aAl)}")
                a(f"ds_write_b32 {T[3]}, {v(vL0)} offset:{LSUM - ALPHA}")
            a("s_waitcnt lgkmcnt(0)")
            stamp(9 + 2 * n)
            for x in dma:
                a(x)

    def rescale(al, small):
        lab = a.newlabel("rs")
        rare_blocks.append([f"R_{lab}:", f"v_mov_b32 {v(vt0)}, {v(al)}",
                            f"s_call_b64 {s(sRET, 2)}, {K}_rs{'e' if small else ''}", f"s_branch K_{lab}"])
        return [f"v_cmp_neq_f32 vcc, 1.0, {v(al)}", f"s_cbranch_vccnz R_{lab}\nK_{lab}:"]

    def rs_rare(small):
        regs = range(YOE, YOE + 48) if small else range(YO, YO + 96)
        rb = [f"{K}_rs{'e' if small else ''}:", "s_nop 15"]
        for r in regs:
            rb.append(f"v_mul_f32 {v(r)}, {v(vt0)}, {v(r)}")
        rb += ["s_nop 1", f"s_setpc_b64 {s(sRET, 2)}"]
        return rb

    def att_y(vq):
        for gi in (0, 1):
            for x in kv_dma("V", gi, vq):
                a(x)
        a(f"v_and_b32 {T[2]}, 15, {L}")
        a(f"v_lshlrev_b32 {T[2]}, 4, {T[2]}")
        a(f"v_lshrrev_b32 {T[3]}, 5, {L}")
        a(f"v_lshl_add_u32 {T[2]}, {T[3]}, 9, {T[2]}")
        a(f"v_bfe_u32 {T[3]}, {L}, 4, 1")
        a(f"v_lshl_add_u32 {T[2]}, {T[3]}, 3, {T[2]}")
        a(f"s_lshl_b32 {s(sT0)}, {s(sW)}, 7")
        a(f"v_subrev_u32 {T[4]}, {s(sT0)}, {v(aAl)}")
        issued = 2
        for n in range(17):
            p = n - 1
            task, t = p >> 3, p & 7
            need = {("V", 2 * n - 2), ("V", 2 * n - 1)}
            if any(q in need for q in vq.q):
                a(f"s_waitcnt vmcnt({vq.wait_for(need)})")
            a("s_barrier")
            stamp(8 + 2 * n)
            dma = []
            while issued <= min(max(2 * n + 2, 4), 31):
                dma += kv_dma("V", issued, vq)
                issued += 1
            for x in dma:
                a(x)
            if n == 0:
                continue
            pbuf = p & 1
            pb = PBUF[pbuf] - PR
            for bk in range(2):
                a(f"ds_read_b32 {v(vAa[bk])}, {v(aAl)} offset:{pbuf * 1024 + 128 * bk}")
            for i in range(4):
                a(f"ds_read_b128 {v(YP + 4 * i, 4)}, {v(aPw)} offset:{pb + 1024 * i}")
            rd, mf = [], []
            for bk in range(2):
                u = vunit(2 * p + bk) * UNIT
                for s2 in range(2):
                    for Tt in range(6):
                        i = 12 * bk + 6 * s2 + Tt
                        f = YVF + 4 * (i % 8)
                        off = u + 16 * s2 * 384 + (Tt >> 1) * 128
                        rd.append("\n".join(
                            f"ds_read_b64_tr_b16 {v(f + 2 * jj, 2)}, {v(aM[2 * (Tt & 1) + jj])} offset:{off}"
                            for jj in range(2)))
                        acc = v(YO + 16 * Tt, 16)
                        cin = "0" if (t == 0 and i < 6) else acc
                        m = f"v_mfma_f32_32x32x16_bf16 {acc}, {v(f, 4)}, {v(YP + 8 * bk + 4 * s2, 4)}, {cin}"
                        if i % 2 == 0:
                            m = f"@need {v(YVF + 4 * ((i + 1) % 8), 4)}\n" + m
                        mf.append(m)
            AH = 5
            for x in rd[:AH]:
                a(x)
            if t:
                for x in rescale(vAa[0], False):
                    a(x)
            for i in range(24):
                if i == 12:
                    for x in rescale(vAa[1], False):
                        a(x)
                a(mf[i])
                if i + AH < 24:
                    a(rd[i + AH])
            lab = a.newlabel("ye")
            a(f"s_cmp_lg_u32 {s(sW)}, {PEW[task]}")
            a(f"s_cbranch_scc1 {lab}")
            for bk in range(2):
                a(f"ds_read_b32 {v(vAeY[bk])}, {v(aAe)} offset:{ALPHAE - SMALL + pbuf * 128 + bk * 64}")
                a(f"ds_read_b128 {v(YPE + 4 * bk, 4)}, {v(aPe)} offset:{pbuf * 2048 + bk * 1024}")
            if t == 7:
                a(f"ds_read_b32 {v(vLei)}, {v(aAe)} offset:{LE - SMALL}")
            rd, mf = [], []
            for bk in range(2):
                u = vunit(2 * p + bk) * UNIT
                for dt in range(12):
                    i = 12 * bk + dt
                    f = YVF + 4 * (i % 8)
                    rd.append("\n".join(
                        f"ds_read_b64_tr_b16 {v(f + 2 * jj, 2)}, {v(aE[dt & 3])} offset:{u + 16 * jj * 384 + (dt >> 2) * 128}"
                        for jj in range(2)))
                    acc = v(YOE + 4 * dt, 4)
                    cin = "0" if (t == 0 and bk == 0) else acc
                    m = f"v_mfma_f32_16x16x32_bf16 {acc}, {v(f, 4)}, {v(YPE + 4 * bk, 4)}, {cin}"
                    if i % 2 == 0:
                        m = f"@need {v(YVF + 4 * ((i + 1) % 8), 4)}\n" + m
                    mf.append(m)
            AH = 6
            for x in rd[:AH]:
                a(x)
            if t:
                for x in rescale(vAeY[0], True):
                    a(x)
            for i in range(24):
                if i == 12:
                    for x in rescale(vAeY[1], True):
                        a(x)
                a(mf[i])
                if i + AH < 24:
                    a(rd[i + AH])
            if t == 7:
                for dt in range(12):
                    b0 = YOE + 4 * dt
                    for e in range(4):
                        a(f"v_mul_f32 {v(b0 + e)}, {v(vLei)}, {v(b0 + e)}")
                    a(f"v_cvt_pk_bf16_f32 {v(b0)}, {v(b0)}, {v(b0 + 1)}")
                    a(f"v_cvt_pk_bf16_f32 {v(b0 + 1)}, {v(b0 + 2)}, {v(b0 + 3)}")
                    if dt % 4 == 0:
                        a(f"s_add_u32 {s(sT0)}, {s(sOE)}, {(task * 48 + (dt >> 2)) * 36 * 4096}")
                    a(f"buffer_store_dwordx2 {v(b0, 2)}, {T[2]}, {s(SWS, 4)}, {s(sT0)} offen offset:{1024 * (dt & 3)}{ONT}")
            a.label(lab)
            if t == 7:
                a(f"ds_read_b32 {v(vLi)}, {T[4]} offset:{LSUM - ALPHA}")
                for fi in range(12):
                    b0 = YO + 8 * fi
                    for e in range(8):
                        a(f"v_mul_f32 {v(b0 + e)}, {v(vLi)}, {v(b0 + e)}")
                    d = YVF + 4 * (fi % 8)
                    for e in range(4):
                        a(f"v_cvt_pk_bf16_f32 {v(d + e)}, {v(b0 + 2 * e)}, {v(b0 + 2 * e + 1)}")
                    if fi % 4 == 0:
                        a(f"s_add_u32 {s(sT0)}, {s(sOM)}, {(task * 48 + (fi >> 2)) * 36 * 4096}")
                    a(f"buffer_store_dwordx4 {v(d, 4)}, {v(aLin)}, {s(SWS, 4)}, {s(sT0)} offen offset:{1024 * (fi % 4)}{ONT}")
                    vq.issue("st")
            a("s_waitcnt lgkmcnt(0)")
            stamp(9 + 2 * n)

    for role in ("X", "Y"):
        if role == "Y":
            a.label(f"{K}_Y")
        if cfg.get("stamp"):
            T = T[:7]
        stamp(0)
        stamp(62, True)
        vq = VMQ()
        if TOUCH:
            touch_setup(role)
            for x in touch(role, vq, 0, 2):
                a(x)
        for k in range(2):
            for x in stage_dma(k, vq):
                a(x)
        addr_setup(role)
        qp_phase(role, vq)
        if role == "X":
            att_x(vq)
        else:
            att_y(vq)
        if cfg.get("stamp"):
            a("s_waitcnt vmcnt(0)")
            stamp(60)
            stamp(63, True)
            srd(a, 52, sP + 24, sP + 25, 0x10000000)
            a(f"s_lshl_b32 {s(sT0)}, s2, 3")
            a(f"s_add_u32 {s(sT0)}, {s(sT0)}, {s(sWV)}")
            a(f"s_lshl_b32 {s(sT0)}, {s(sT0)}, 8")
            a(f"s_add_u32 {s(sT0)}, {s(sT0)}, 0x4000000")
            a(f"v_lshlrev_b32 v7, 2, v0")
            a(f"buffer_store_dword v8, v7, s[52:55], {s(sT0)} offen")
        a("s_endpgm")
        for rb in rare_blocks:
            for x in rb:
                a(x)
        rare_blocks.clear()
        for small in (False, True):
            for x in (sm_rare(small) if role == "X" else rs_rare(small)):
                a(x)
    a.label(f"{K}_end")
    a("s_endpgm")
```

```python
import numpy as np

from asmlib import v, s, interleave
from lanecalc import LC, mask_of, emit_mask
from common import *

UNIT = 12288
PAIR = 24576
KR = 0
VR = 3 * PAIR
PR = 5 * PAIR
STG = 2 * PAIR
SW = PAIR
XST = PR
SX_ = 9216
PBUF = [PR, PR + 16384]
PE = PR + 32768
SMALL = PE + 4096
ALPHA = SMALL
ALPHAE = SMALL + 2048
LSUM = SMALL + 2304
LE = SMALL + 2816
QE = [XST, XST + 2 * SX_]
LDS_K1 = 163840
PEW = [0, 2]
PEWY = [1, 3]
OOB = 0x7fff0000


def gen_k1(a, cfg):
    KVNT = " nt"
    WNT = " nt" if cfg.get("wnt", 0) else ""
    XNT = " nt" if cfg.get("xnt", 0) else ""
    ONT = " nt" if cfg.get("ont", 0) else ""
    TOUCH = cfg.get("touch", 1)
    SX, SWQ, SK, SV, SWS = 8, 12, 16, 20, 24
    sBLK, sB, sH, sHH, sWV, sW, sKV, sC = 28, 29, 30, 31, 32, 33, 34, 35
    sWOFF, sX0, sXE, sTCH, sT0, sT1, sT2 = 36, 37, 38, 39, 40, 41, 42
    sM3, sMW, sNC, sTC, sOM, sOE, sMX = 44, 45, 46, 47, 48, 49, 50
    sRET = 60
    sN, sG, sMI, sD, sPD, sAD, sED, sPEW, sSL, sBIG, sKC, sTP, sPI, sOT = 51, 52, 53, 54, 55, 56, 57, 58, 59, 62, 63, 43, 92, 93
    SDBG = 96
    sP = 64
    L = "v0"
    T = [f"v{i}" for i in range(1, 9)]
    pKV = [9, 10, 11]
    pW = [12, 13, 14]
    pX = 15
    aW = {(tp, jj): 16 + 2 * tp + jj for tp in range(2) for jj in range(2)}
    aXB = [20, 21]
    aWe = {(i, jj): 22 + 2 * i + jj for i in range(3) for jj in range(2)}
    aXe = 28
    aLin = 29
    aM = [30, 31, 32, 33]
    aE = [34, 35, 36, 37]
    aAl, aAe, aPw, aQE, aPe = 38, 39, 40, 41, 42
    vM, vNM, vTH, vAL, vL0, vL1 = 43, 44, 45, 46, 47, 48
    vMe, vNMe, vTHe, vALe, vLe = 49, 50, 51, 52, 53
    vt0, vt1 = 54, 55
    vF, vFe = 28, 41
    vTCH, vDUM = 43, 44
    QACC, QSA = 56, 236
    QA = {0: 164, 1: 192}
    QB = {0: 188, 1: 216}
    QAE, QBE = 220, 232
    XQ = [160, 208]
    XQE, XS, XSE, XKF, XP = 136, [56, 72], [88, 96], 104, [12, 20]
    YO, YOE, YVF, YP, YPE = 56, 152, 200, 232, 248
    vAa = [43, 44]
    vAeY = [45, 46]
    vLi, vLei = 47, 48

    K = "k1"
    a.label("att_kernel")
    a("s_cmp_ge_u32 s2, 256")
    a(f"s_cbranch_scc1 {K}_end")
    a(f"s_load_dwordx16 {s(sP, 16)}, s[0:1], 0")
    a(f"s_load_dwordx8 {s(sP + 16, 8)}, s[0:1], 64")
    a(f"s_load_dwordx2 {s(sP + 24, 2)}, s[0:1], 96")
    c = LC(a)
    c.shr(T[0], 6, "v0")
    a(f"v_readfirstlane_b32 {s(sWV)}, {T[0]}")
    c.and_("v0", 63, "v0")
    c.set_s(s(sWV), np.arange(8))
    a(f"s_and_b32 {s(sW)}, {s(sWV)}, 3")
    c.set_s(s(sW), np.arange(8) & 3)
    a(f"""
    s_bfe_u32 {s(sBLK)}, s2, 0x10002
    s_bfe_u32 {s(sB)}, s2, 0x30003
    s_and_b32 {s(sT0)}, s2, 3
    s_lshr_b32 {s(sHH)}, s2, 6
    s_lshl_b32 {s(sT0)}, {s(sT0)}, 2
    s_add_u32 {s(sH)}, {s(sT0)}, {s(sHH)}
    s_mov_b32 {s(sC)}, {hex(f32(CSCALE))}
    s_mov_b32 {s(sNC)}, {hex(f32(-CSCALE))}
    s_mov_b32 {s(sTC)}, {hex(f32(TLAZY / CSCALE))}
    s_mul_i32 {s(sM3)}, {s(sW)}, 3072
    s_mul_i32 {s(sMW)}, {s(sWV)}, 3072
    s_lshl_b32 {s(sMX)}, {s(sWV)}, 10
    """)
    c.set_s(s(sM3), (np.arange(8) & 3) * 3072)
    RR = WV >> 2
    a(f"""
    s_lshl_b32 {s(sT0)}, {s(sB)}, 5
    s_add_u32 {s(sT0)}, {s(sT0)}, {s(sH)}
    s_mul_i32 {s(sKV)}, {s(sT0)}, 196608
    s_lshr_b32 {s(sT0)}, {s(sWV)}, 2
    s_lshl_b32 {s(sT0)}, {s(sT0)}, 4
    s_add_u32 {s(sT0)}, {s(sT0)}, {s(sH)}
    s_mul_i32 {s(sWOFF)}, {s(sT0)}, 384
    s_and_b32 {s(sT0)}, {s(sB)}, 1
    s_mul_i32 {s(sT1)}, {s(sB)}, 144
    s_add_u32 {s(sT2)}, {s(sT0)}, {s(sWV)}
    s_lshl_b32 {s(sT2)}, {s(sT2)}, 4
    s_add_u32 {s(sT2)}, {s(sT2)}, {s(sT1)}
    s_mul_i32 {s(sX0)}, {s(sT2)}, 1280
    s_xor_b32 {s(sT2)}, {s(sT0)}, 1
    s_lshl_b32 {s(sT2)}, {s(sT2)}, 7
    s_add_u32 {s(sT2)}, {s(sT2)}, {s(sT1)}
    s_mul_i32 {s(sXE)}, {s(sT2)}, 1280
    s_mul_i32 {s(sT1)}, {s(sB)}, 9
    s_add_u32 {s(sT1)}, {s(sT1)}, {s(sT0)}
    s_lshr_b32 {s(sT1)}, {s(sT1)}, 1
    s_add_u32 {s(sT1)}, {s(sT1)}, {s(sW)}
    s_mul_i32 {s(sT2)}, {s(sBLK)}, 96
    s_mul_i32 {s(sOM)}, {s(sH)}, 3
    s_add_u32 {s(sT2)}, {s(sT2)}, {s(sOM)}
    s_mul_i32 {s(sT2)}, {s(sT2)}, 36
    s_add_u32 {s(sOM)}, {s(sT1)}, {s(sT2)}
    s_lshl_b32 {s(sOM)}, {s(sOM)}, 12
    s_lshr_b32 {s(sOE)}, {s(sB)}, 1
    s_mul_i32 {s(sOE)}, {s(sOE)}, 9
    s_add_u32 {s(sOE)}, {s(sOE)}, 4
    s_add_u32 {s(sOE)}, {s(sOE)}, {s(sT2)}
    s_lshl_b32 {s(sOE)}, {s(sOE)}, 12
    s_lshl_b32 {s(sT0)}, {s(sT0)}, 8
    s_add_u32 {s(sOE)}, {s(sOE)}, {s(sT0)}
    """)
    fr, fc, fh, fg, fG1 = "v46", "v47", "v48", "v49", "v50"
    c.bfe(fr, L, 2, 2)
    c.and_(fc, 3, L)
    c.shr(fh, 5, L)
    c.shr(fg, 4, L)
    c.bfe(fG1, L, 4, 1)
    r_, c_, h_, g_, G1_ = (LANE >> 2) & 3, LANE & 3, LANE >> 5, LANE >> 4, (LANE >> 4) & 1
    row, chk, sub = "v51", "v52", "v53"
    t1, t2, t3 = T[0], T[1], T[2]
    for j in range(3):
        c.add(T[3], 64 * j, L)
        c.shr(T[4], 3, T[3])
        c.mul24(T[4], 11, T[4])
        c.shr(T[4], 5, T[4])
        c.mul24(T[5], 24, T[4])
        c.sub(T[5], T[3], T[5])
        c.mov(T[6], s(sW))
        c.lshl_add(row, T[6], 3, T[4])
        emit_mask(c, t3, row, t1, t2)
        c.xor(T[6], L, t3)
        c.lshl_add(v(pKV[j]), T[6], 4, s(sM3))
        c.xor(T[5], T[5], t3)
        c.mul24(T[6], 12288, row)
        c.lshl_add(T[6], T[5], 4, T[6])
        c.add(v(pW[j]), (-1024 * j) & 0xFFFFFFFF if j else 0, T[6])
        p = 64 * j + LANE
        rw = 8 * W4 + p // 24
        c.check(v(pKV[j]), rw * 384 + (((p % 24) ^ mask_of(rw)) * 16) - 1024 * j)
        c.check(v(pW[j]), rw * 12288 + (((p % 24) ^ mask_of(rw)) * 16) - 1024 * j)
    c.sub(T[3], 0, fg)
    c.and_(T[3], 3, T[3])
    c.xor(T[3], fc, T[3])
    c.shr(T[4], 2, L)
    c.mul24(T[4], 1280, T[4])
    c.lshl_add(v(pX), T[3], 4, T[4])
    c.check(v(pX), (LANE >> 2) * 1280 + (((LANE & 3) ^ ((-(LANE >> 4)) & 3)) << 4))

    a("s_waitcnt lgkmcnt(0)")
    a(f"s_cmp_eq_u32 {s(sBLK)}, 0")
    for i in range(4):
        a(f"s_cselect_b64 {s(sP + 2 * i, 2)}, {s(sP + 2 * i, 2)}, {s(sP + 10 + 2 * i, 2)}")
    srd(a, SX, sP + 0, sP + 1, 8 * 144 * 640 * 2)
    srd(a, SK, sP + 2, sP + 3, 8 * 32 * 512 * 192 * 2)
    srd(a, SV, sP + 4, sP + 5, 8 * 32 * 512 * 192 * 2)
    srd(a, SWQ, sP + 6, sP + 7, 640 * 6144 * 2)
    srd(a, SWS, sP + 24, sP + 25, O_BYTES)
    a(f"s_cmp_ge_u32 {s(sWV)}, 4")
    a(f"s_cbranch_scc1 {K}_Y")

    rare_blocks = []

    def stamp(i, real=False):
        if not cfg.get("stamp"):
            return
        a(f"{'s_memrealtime' if real else 's_memtime'} s[90:91]")
        a("s_waitcnt lgkmcnt(0)")
        a(f"v_writelane_b32 v8, s90, {i}")

    def touch_setup(role):
        if role == "X":
            a(f"""
            v_cmp_le_u32 vcc, 24, {L}
            v_cndmask_b32 {T[0]}, 0, 1, vcc
            v_mul_u32_u24 {T[1]}, 24, {T[0]}
            v_sub_u32 {T[1]}, {L}, {T[1]}
            v_mul_u32_u24 {T[2]}, 11, {T[1]}
            v_lshrrev_b32 {T[2]}, 5, {T[2]}
            v_mul_u32_u24 {T[3]}, 3, {T[2]}
            v_sub_u32 {T[3]}, {T[1]}, {T[3]}
            v_mul_u32_u24 {T[2]}, {8 * 12288}, {T[2]}
            v_mul_u32_u24 {T[0]}, 6144, {T[0]}
            v_lshl_add_u32 {T[2]}, {T[3]}, 7, {T[2]}
            v_add_u32 {T[2]}, {T[0]}, {T[2]}
            v_mov_b32 {T[3]}, 0x7fffffff
            v_cmp_gt_u32 vcc, 48, {L}
            v_cndmask_b32 {v(vTCH)}, {T[3]}, {T[2]}, vcc
            s_lshl_b32 {s(sT0)}, {s(sW)}, 6
            s_add_u32 {s(sT0)}, {s(sT0)}, {s(sB)}
            s_mul_i32 {s(sTCH)}, {s(sT0)}, 12288
            s_add_u32 {s(sTCH)}, {s(sTCH)}, {s(sWOFF)}
            """)
        else:
            a(f"""
            v_mul_u32_u24 {T[2]}, 1280, {L}
            v_mov_b32 {T[3]}, 0x7fffffff
            v_cmp_gt_u32 vcc, 36, {L}
            v_cndmask_b32 {v(vTCH)}, {T[3]}, {T[2]}, vcc
            s_mul_i32 {s(sT0)}, {s(sB)}, 144
            s_mul_i32 {s(sT1)}, {s(sHH)}, 36
            s_add_u32 {s(sT0)}, {s(sT0)}, {s(sT1)}
            s_mul_i32 {s(sTCH)}, {s(sT0)}, 1280
            s_lshl_b32 {s(sT0)}, {s(sW)}, 7
            s_add_u32 {s(sTCH)}, {s(sTCH)}, {s(sT0)}
            """)

    def touch(role, n):
        lab = a.newlabel("KS_t")
        stride = 64 * 12288 if role == "X" else 128
        sr, nt = (SWQ, WNT) if role == "X" else (SX, XNT)
        return ["\n".join([f"s_cmp_ge_u32 {s(sW)}, {n}",
                           f"s_cbranch_scc1 {lab}",
                           f"buffer_load_dword {v(vDUM)}, {v(vTCH)}, {s(sr, 4)}, {s(sTCH)} offen{nt}",
                           f"{lab}:",
                           f"s_add_u32 {s(sTCH)}, {s(sTCH)}, {n * stride}"])]

    def addr_setup(role):
        cc = LC(a)
        cc.val = dict(c.val)
        r = 0 if role == "X" else 1
        waves = [0, 1, 2, 3] if role == "X" else [4, 5, 6, 7]
        wb = STG + r * 12288
        cc.and_(T[3], 1, fc)
        cc.lshl_or(T[3], fG1, 1, T[3])
        cc.shr(sub, 1, fc)
        for tp in range(2):
            for jj in range(2):
                cc.lshl_or(row, fh, 3, fr)
                if jj:
                    cc.add(row, 4, row)
                cc.or_(chk, 4 * tp, T[3])
                tr_addr(cc, v(aW[tp, jj]), row, chk, sub, wb, t1, t2, t3)
                cc.check(v(aW[tp, jj]), tr_ref(8 * h_ + 4 * jj + r_, 4 * tp + 2 * G1_ + (c_ & 1), c_ >> 1, wb))
        cc.bfe(T[4], L, 2, 2)
        cc.sub(T[4], 0, T[4])
        cc.and_(T[4], 3, T[4])
        cc.and_(T[5], 31, L)
        cc.mov(T[6], s(sW))
        cc.lshl_add(T[5], T[6], 5, T[5])
        cc.shl(T[5], 6, T[5])
        for s2 in range(2):
            cc.or_(T[6], 2 * s2, fh)
            cc.xor(T[6], T[4], T[6])
            cc.lshl_add(T[6], T[6], 4, T[5])
            cc.add(v(aXB[s2]), XST, T[6])
            q = LANE & 31
            cc.check(v(aXB[s2]), XST + (32 * W4 + q) * 64 + (((2 * s2 + h_) ^ ((-(q >> 2)) & 3)) << 4))
        cc.xor(T[6], T[4], fg)
        cc.and_(T[5], 15, L)
        cc.shl(T[5], 6, T[5])
        cc.lshl_add(T[6], T[6], 4, T[5])
        cc.add(v(aXe), XST + 8192, T[6])
        q16 = LANE & 15
        cc.check(v(aXe), XST + 8192 + q16 * 64 + ((g_ ^ ((-(q16 >> 2)) & 3)) << 4))
        cc.and_(sub, 1, fc)
        for i in range(3):
            cc.mov(T[4], s(sW))
            cc.mul24(T[4], 6, T[4])
            cc.shr(T[5], 1, fc)
            cc.add(T[4], T[4], T[5])
            cc.add(chk, 2 * i, T[4])
            for jj in range(2):
                cc.lshl_or(row, fg, 3, fr)
                if jj:
                    cc.add(row, 4, row)
                tr_addr(cc, v(aWe[i, jj]), row, chk, sub, wb, t1, t2, t3)
                dt = 3 * W4 + i
                cc.check(v(aWe[i, jj]), tr_ref(8 * g_ + 4 * jj + r_, 2 * dt + (c_ >> 1), c_ & 1, wb), waves)
        cc.shl(v(aLin), 4, L)
        cc.and_(T[5], 31, L)
        cc.shl(T[5], 2, T[5])
        cc.mov(T[6], s(sW))
        cc.lshl_add(T[5], T[6], 8, T[5])
        cc.add(v(aAl), ALPHA, T[5])
        cc.and_(T[5], 15, L)
        cc.shl(T[5], 2, T[5])
        cc.add(v(aAe), SMALL, T[5])
        cc.lshl_add(T[5], T[6], 12, v(aLin))
        cc.add(v(aPw), PR, T[5])
        cc.add(v(aPe), PE, v(aLin))
        cc.and_(T[5], 15, L)
        cc.mul24(v(aQE), 384, T[5])
        if role == "X":
            cc.and_(row, 31, L)
            for i in range(4):
                cc.or_(chk, 2 * i, fh)
                tr_addr(cc, v(aM[i]), row, chk, None, KR, t1, t2, t3)
                cc.check(v(aM[i]), tr_ref(LANE & 31, 2 * i + h_, 0, KR))
            cc.and_(row, 15, L)
            for p in range(2):
                cc.or_(chk, 4 * p, fg)
                tr_addr(cc, v(aE[p]), row, chk, None, KR, t1, t2, t3)
                cc.check(v(aE[p]), tr_ref(LANE & 15, 4 * p + g_, 0, KR))
        else:
            cc.and_(T[3], 1, fc)
            cc.lshl_or(T[3], fG1, 1, T[3])
            cc.shr(sub, 1, fc)
            for tp in range(2):
                for jj in range(2):
                    cc.lshl_or(row, fh, 2, fr)
                    if jj:
                        cc.add(row, 8, row)
                    cc.or_(chk, 4 * tp, T[3])
                    tr_addr(cc, v(aM[2 * tp + jj]), row, chk, sub, VR, t1, t2, t3)
                    cc.check(v(aM[2 * tp + jj]),
                             tr_ref(8 * jj + 4 * h_ + r_, 4 * tp + 2 * G1_ + (c_ & 1), c_ >> 1, VR))
            cc.and_(sub, 1, fc)
            cc.lshl_or(row, fg, 2, fr)
            for i in range(4):
                cc.shr(chk, 1, fc)
                cc.or_(chk, 2 * i, chk)
                tr_addr(cc, v(aE[i]), row, chk, sub, VR, t1, t2, t3)
                cc.check(v(aE[i]), tr_ref(4 * g_ + r_, 2 * i + (c_ >> 1), c_ & 1, VR))

    def kv_pair(kind):
        sr = SK if kind == "K" else SV
        out = []
        for hf in range(2):
            out.append(f"s_add_u32 m0, {s(sMI)}, {hf * UNIT}")
            out.append(f"s_add_u32 {s(sT0)}, {s(sG)}, {hf * UNIT}")
            for j in range(3):
                off = f" offset:{1024 * j}" if j else ""
                out.append(f"buffer_load_dwordx4 {v(pKV[j])}, {s(sr, 4)}, {s(sT0)} offen{off}{KVNT} lds")
        nring = 3 if kind == "K" else 2
        base = KR if kind == "K" else VR
        out += [f"s_add_u32 {s(sPI)}, {s(sPI)}, 1",
                f"s_add_u32 {s(sTP)}, {s(sTP)}, 1",
                f"s_and_b32 {s(sTP)}, {s(sTP)}, 7",
                f"s_mul_i32 {s(sG)}, {s(sTP)}, {PAIR}",
                f"s_add_u32 {s(sG)}, {s(sG)}, {s(sKV)}",
                f"s_cmp_ge_u32 {s(sPI)}, 8",
                f"s_cselect_b32 {s(sT0)}, {16 * 196608}, 0",
                f"s_add_u32 {s(sG)}, {s(sG)}, {s(sT0)}",
                f"s_cmp_ge_u32 {s(sPI)}, 16",
                f"s_cselect_b32 {s(sG)}, {hex(OOB)}, {s(sG)}",
                f"s_add_u32 {s(sMI)}, {s(sMI)}, {PAIR}",
                f"s_cmp_ge_u32 {s(sMI)}, {base + nring * PAIR}",
                f"s_cselect_b32 {s(sT0)}, {nring * PAIR}, 0",
                f"s_sub_u32 {s(sMI)}, {s(sMI)}, {s(sT0)}"]
        return out

    def stage_dma(k):
        st = STG + (k % 3) * SW
        sx = XST + (k % 3) * SX_
        lab = a.newlabel("KS_skip")
        out = ["\n".join([f"s_cmp_lg_u32 {s(sWV)}, {s(sKC)}",
                          f"s_mov_b32 m0, {sx + 8192}",
                          f"s_cbranch_scc1 {lab}",
                          f"buffer_load_dwordx4 {v(pX)}, {s(SX, 4)}, {s(sXE)} offen{XNT} lds",
                          f"{lab}:"]),
               f"s_add_u32 m0, {s(sMW)}, {st}",
               f"s_add_u32 {s(sXE)}, {s(sXE)}, 64"]
        for j in range(3):
            off = f" offset:{1024 * j}" if j else ""
            out.append(f"buffer_load_dwordx4 {v(pW[j])}, {s(SWQ, 4)}, {s(sWOFF)} offen{off}{WNT} lds")
        out += [f"s_add_u32 m0, {s(sMX)}, {sx}",
                f"s_add_u32 {s(sWOFF)}, {s(sWOFF)}, {32 * 12288}",
                f"buffer_load_dwordx4 {v(pX)}, {s(SX, 4)}, {s(sX0)} offen{XNT} lds",
                f"s_add_u32 {s(sX0)}, {s(sX0)}, 64",
                f"s_add_u32 {s(sKC)}, {s(sKC)}, 1",
                f"s_and_b32 {s(sKC)}, {s(sKC)}, 7"]
        return out

    def qp_phase(role):
        def rdA(k, s2, Tt):
            return [f"ds_read_b64_tr_b16 {v(QA[s2] + 4 * Tt + 2 * jj, 2)}, {v(aW[Tt & 1, jj])} "
                    f"offset:{(k % 3) * SW + 16 * s2 * 384 + (Tt >> 1) * 128}" for jj in range(2)]

        def rdB(k, s2):
            return [f"ds_read_b128 {v(QB[s2], 4)}, {v(aXB[s2])} offset:{(k % 3) * SX_}"]

        def rdAe(k, i):
            return [f"ds_read_b64_tr_b16 {v(QAE + 4 * i + 2 * jj, 2)}, {v(aWe[i, jj])} "
                    f"offset:{(k % 3) * SW}" for jj in range(2)]

        def rdBe(k):
            return [f"ds_read_b128 {v(QBE, 4)}, {v(aXe)} offset:{(k % 3) * SX_}"]

        def big(k, s2, Tt):
            acc = v(QACC + 16 * Tt, 16)
            cin = "0" if (k == 0 and s2 == 0) else acc
            return f"v_mfma_f32_32x32x16_bf16 {acc}, {v(QA[s2] + 4 * Tt, 4)}, {v(QB[s2], 4)}, {cin}"

        def small(k, i):
            acc = v(QSA + 4 * i, 4)
            return f"v_mfma_f32_16x16x32_bf16 {acc}, {v(QAE + 4 * i, 4)}, {v(QBE, 4)}, {acc}"

        ALT = {0: {4: QA[1] + 16, 5: QA[1] + 20, "B": QB[1]}, 1: {4: 152, 5: 156, "B": 160}}

        def regA(k, s2, Tt):
            return ALT[k & 1][Tt] if (s2 == 1 and Tt >= 4) else QA[s2] + 4 * Tt

        def regB(k, s2):
            return ALT[k & 1]["B"] if s2 == 1 else QB[0]

        def rdA2(k, s2, Tt):
            return [f"ds_read_b64_tr_b16 {v(regA(k, s2, Tt) + 2 * jj, 2)}, {v(aW[Tt & 1, jj])} "
                    f"offset:{(k % 3) * SW + 16 * s2 * 384 + (Tt >> 1) * 128}" for jj in range(2)]

        def rdB2(k, s2):
            return [f"ds_read_b128 {v(regB(k, s2), 4)}, {v(aXB[s2])} offset:{(k % 3) * SX_}"]

        def big2(k, s2, Tt):
            acc = v(QACC + 16 * Tt, 16)
            return f"v_mfma_f32_32x32x16_bf16 {acc}, {v(regA(k, s2, Tt), 4)}, {v(regB(k, s2), 4)}, {acc}"

        def slot():
            l1, l2 = a.newlabel("KS_s"), a.newlabel("KS_s")
            o = [f"s_mov_b32 {s(sBIG)}, 0",
                 f"s_cmp_ge_u32 {s(sSL)}, 2",
                 f"s_cbranch_scc1 {l1}"]
            if TOUCH:
                o += touch(role, 3)
            o.append(f"{l1}:")
            if role == "X":
                o += [f"s_and_b32 {s(sT0)}, {s(sSL)}, 6",
                      f"s_cmp_lg_u32 {s(sT0)}, 2",
                      f"s_cbranch_scc1 {l2}"] + kv_pair("K") + [f"s_mov_b32 {s(sBIG)}, 1", f"{l2}:"]
            o.append(f"s_add_u32 {s(sSL)}, {s(sSL)}, 1")
            return ["\n".join(o)]

        def iteration(k, in_loop):
            if k <= 19:
                if in_loop and role == "X" and k % 3 != 0:
                    lab = a.newlabel("KS_w")
                    a(f"s_cmp_eq_u32 {s(sBIG)}, 1")
                    a(f"s_cbranch_scc1 {lab}")
                    a("s_waitcnt vmcnt(4)")
                    a.label(lab)
                    a("s_waitcnt vmcnt(10)")
                else:
                    a("s_waitcnt vmcnt(4)")
            else:
                a("s_waitcnt vmcnt(0)")
            a("s_barrier")
            if k in (0, 19):
                stamp(1 + (0, 19).index(k))
            dma = stage_dma(k + 2) if k <= 18 else []
            if k == 0 and TOUCH:
                dma += touch(role, 3)
            if in_loop and k % 3 == 0:
                dma += slot()
            if k == 20 and role == "Y":
                dma = kv_pair("V")
            seq = []
            for i in range(3):
                seq.append((small(k - 1, i), rdAe(k, i) + (rdBe(k) if i == 2 else [])))
            early = rdA2(k, 1, 4) + rdA2(k, 1, 5) + rdB2(k, 1)
            for Tt in range(6):
                seq.append((big2(k - 1, 0, Tt), rdA2(k, 0, Tt) + (rdB2(k, 0) if Tt == 5 else early[Tt:Tt + 1])))
            for Tt in range(6):
                seq.append((big2(k - 1, 1, Tt), rdA2(k, 1, Tt) if Tt < 4 else []))
            if role == "Y":
                for x in dma:
                    a(x)
            for m, rf in seq:
                if k:
                    a(m)
                if k < 20:
                    for x in rf:
                        a(x)
            if role == "X":
                for x in dma:
                    a(x)
            if k < 20:
                a("s_waitcnt lgkmcnt(0)")

        for r in list(range(QACC, QACC + 96)) + list(range(QSA, QSA + 12)):
            a(f"v_mov_b32 {v(r)}, 0")
        a(f"s_mov_b32 {s(sSL)}, 0")
        a(f"s_mov_b32 {s(sBIG)}, 0")
        iteration(0, False)
        a.label(f"{K}_qp{role}")
        for k in range(1, 7):
            iteration(k, True)
        a(f"s_cmp_lt_u32 {s(sSL)}, 6")
        a(f"s_cbranch_scc1 {K}_qp{role}")
        iteration(19, False)
        iteration(20, False)
        r = 0 if role == "X" else 1
        a(f"v_lshrrev_b32 {T[0]}, 4, {L}")
        a(f"v_lshl_add_u32 {T[0]}, {T[0]}, 3, {v(aQE)}")
        a(f"s_mul_i32 {s(sT0)}, {s(sW)}, 96")
        a(f"s_add_u32 {s(sT0)}, {s(sT0)}, {QE[r]}")
        a(f"v_add_u32 {T[0]}, {s(sT0)}, {T[0]}")
        qh_addr(T[1])
        dst = XQ[0] if role == "X" else 160
        for Tt in range(6):
            for e in range(8):
                a(f"v_cvt_pk_bf16_f32 {v(dst + 8 * Tt + e)}, {v(QACC + 16 * Tt + 2 * e)}, {v(QACC + 16 * Tt + 2 * e + 1)}")
            if role == "Y":
                for hf in range(2):
                    a(f"ds_write_b128 {T[1]}, {v(dst + 8 * Tt + 4 * hf, 4)} offset:{(2 * Tt + hf) * 1024}")
        for i in range(3):
            a(f"v_cvt_pk_bf16_f32 {v(QSA + 4 * i)}, {v(QSA + 4 * i)}, {v(QSA + 4 * i + 1)}")
            a(f"v_cvt_pk_bf16_f32 {v(QSA + 4 * i + 1)}, {v(QSA + 4 * i + 2)}, {v(QSA + 4 * i + 3)}")
            a(f"ds_write_b64 {T[0]}, {v(QSA + 4 * i, 2)} offset:{32 * i}")
        a("s_waitcnt lgkmcnt(0)")
        stamp(6)
        a("s_barrier")

    def qh_addr(dst):
        a(f"s_and_b32 {s(sT0)}, {s(sW)}, 1")
        a(f"s_mul_i32 {s(sT0)}, {s(sT0)}, 12288")
        a(f"s_lshr_b32 {s(sT1)}, {s(sW)}, 1")
        a(f"s_mul_i32 {s(sT1)}, {s(sT1)}, {2 * SW}")
        a(f"s_add_u32 {s(sT0)}, {s(sT0)}, {s(sT1)}")
        a(f"s_add_u32 {s(sT0)}, {s(sT0)}, {STG}")
        a(f"v_add_u32 {dst}, {s(sT0)}, {v(aLin)}")

    def softmax(S, n, P, st, ls, waddr, aaddr, woff, aoff, small):
        M_, NM_, TH_, AL_ = st
        lab = a.newlabel("sm")
        out = []
        t = v(vt0)
        out.append(f"v_max3_f32 {t}, {v(S)}, {v(S + 1)}, {v(S + 2)}")
        i = 3
        while i + 1 < n:
            out.append(f"v_max3_f32 {t}, {t}, {v(S + i)}, {v(S + i + 1)}")
            i += 2
        out.append(f"v_max_f32 {t}, {t}, {v(S + n - 1)}")
        out.append(f"v_mov_b32 {v(AL_)}, 1.0")
        out.append(f"v_cmp_gt_f32 vcc, {t}, {v(TH_)}")
        out.append(f"s_cbranch_vccnz R_{lab}\nK_{lab}:")
        out.append(f"ds_write_b32 {v(aaddr)}, {v(AL_)} offset:{aoff}")

        def post(q):
            o = []
            for e in range(2):
                r = S + 4 * q + 2 * e
                o.append(f"v_cvt_pk_bf16_f32 {v(P + 2 * q + e)}, {v(r)}, {v(r + 1)}")
            for e in range(4):
                lr = ls[e % len(ls)]
                o.append(f"v_add_f32 {v(lr)}, {v(lr)}, {v(S + 4 * q + e)}")
            return o

        for q in range(n // 4):
            for e in range(4):
                r = S + 4 * q + e
                out.append(f"v_fma_f32 {v(r)}, {v(r)}, {s(sC)}, {v(NM_)}")
            for e in range(4):
                r = S + 4 * q + e
                out.append(f"v_exp_f32 {v(r)}, {v(r)}")
            if q > 0:
                out += post(q - 1)
            if q == 2:
                out.append(f"ds_write_b128 {v(waddr)}, {v(P, 4)} offset:{woff}")
        pl = post(n // 4 - 1)
        out += pl[:2]
        if n == 16:
            out.append(f"ds_write_b128 {v(waddr)}, {v(P + 4, 4)} offset:{woff + 1024}")
        else:
            out.append(f"ds_write_b128 {v(waddr)}, {v(P, 4)} offset:{woff}")
        out += pl[2:]
        rare_blocks.append([f"R_{lab}:", f"s_call_b64 {s(sRET, 2)}, {K}_smrare{'e' if small else ''}",
                            f"s_branch K_{lab}"])
        return out

    def sm_rare(small):
        M_, NM_, TH_, AL_ = (vMe, vNMe, vTHe, vALe) if small else (vM, vNM, vTH, vAL)
        F_ = vFe if small else vF
        ls = [vLe] if small else [vL0, vL1]
        t, t2 = v(vt0), v(vt1)
        rb = [f"{K}_smrare{'e' if small else ''}:",
              f"v_mov_b32 {t2}, {t}",
              f"v_permlane32_swap_b32 {t}, {t2}",
              f"v_max_f32 {t}, {t}, {t2}"]
        if small:
            rb += [f"v_mov_b32 {t2}, {t}",
                   f"v_permlane16_swap_b32 {t}, {t2}",
                   f"v_max_f32 {t}, {t}, {t2}"]
        rb += [f"v_max_f32 {t}, {t}, {v(M_)}",
               f"v_sub_f32 {t2}, {v(M_)}, {t}",
               f"v_mul_f32 {t2}, {s(sC)}, {t2}",
               f"v_exp_f32 {v(AL_)}, {t2}",
               f"v_mov_b32 {v(M_)}, {t}",
               f"v_mul_f32 {v(NM_)}, {s(sNC)}, {t}",
               f"v_add_f32 {v(TH_)}, {s(sTC)}, {t}",
               f"v_max_f32 {v(AL_)}, {v(AL_)}, {v(F_)}",
               f"v_mov_b32 {v(F_)}, 0"]
        for lr in ls:
            rb.append(f"v_mul_f32 {v(lr)}, {v(AL_)}, {v(lr)}")
        rb.append(f"s_setpc_b64 {s(sRET, 2)}")
        return rb

    def flip_bufs():
        return [f"v_add_u32 {v(aPw)}, {s(sPD)}, {v(aPw)}",
                f"v_add_u32 {v(aAl)}, {s(sAD)}, {v(aAl)}",
                f"v_add_u32 {v(aPe)}, {s(sED)}, {v(aPe)}",
                f"s_ashr_i32 {s(sT0)}, {s(sED)}, 4",
                f"v_add_u32 {v(aAe)}, {s(sT0)}, {v(aAe)}",
                f"s_sub_u32 {s(sPD)}, 0, {s(sPD)}",
                f"s_sub_u32 {s(sAD)}, 0, {s(sAD)}",
                f"s_sub_u32 {s(sED)}, 0, {s(sED)}"]

    def buf_init(pew):
        a(f"s_mov_b32 {s(sPD)}, 16384")
        a(f"s_mov_b32 {s(sAD)}, 1024")
        a(f"s_mov_b32 {s(sED)}, 2048")
        a(f"s_mov_b32 {s(sPEW)}, {pew}")
        a(f"s_lshl_b32 {s(sT0)}, {s(sW)}, 7")
        a(f"v_subrev_u32 {T[4]}, {s(sT0)}, {v(aAl)}")
        a(f"v_mov_b32 {T[5]}, {v(aAe)}")

    def dstamp(base):
        if not cfg.get("stamp"):
            return
        a("s_memtime s[90:91]")
        a("s_memrealtime s[94:95]")
        a(f"s_mul_i32 {s(sT0)}, {s(sN)}, 3")
        a(f"s_add_u32 m0, {s(sT0)}, {base}")
        a("s_waitcnt lgkmcnt(0)")
        a(f"s_cmp_eq_u32 {s(sW)}, 3")
        a("s_cselect_b32 s90, s94, s90")
        a("v_writelane_b32 v8, s90, m0")

    def att_x():
        qh_addr(T[1])
        for f in range(12):
            a(f"ds_read_b128 {v(XQ[1] + 4 * f, 4)}, {T[1]} offset:{f * 1024}")
        a(f"s_cmp_eq_u32 {s(sW)}, {PEW[1]}")
        a(f"s_cselect_b32 {s(sT0)}, 1, 0")
        a(f"s_mul_i32 {s(sT0)}, {s(sT0)}, {QE[1] - QE[0]}")
        a(f"s_add_u32 {s(sT0)}, {s(sT0)}, {QE[0]}")
        a(f"v_lshrrev_b32 {T[0]}, 4, {L}")
        a(f"v_lshl_add_u32 {T[0]}, {T[0]}, 4, {v(aQE)}")
        a(f"v_add_u32 {T[0]}, {s(sT0)}, {T[0]}")
        for sp in range(6):
            a(f"ds_read_b128 {v(XQE + 4 * sp, 4)}, {T[0]} offset:{64 * sp}")
        buf_init(PEW[0])
        a(f"s_mov_b32 {s(sN)}, 0")
        a(f"s_mov_b32 {s(sD)}, 0")
        a("s_waitcnt lgkmcnt(0)")
        a.label(f"{K}_xloop")
        a("s_waitcnt vmcnt(6)")
        a("s_barrier")
        dstamp(8)
        if cfg.get("nocomp"):
            a("s_branch K_xfin")
        rd, mf = [], []
        for bk in range(2):
            for sx in range(12):
                i = 12 * bk + sx
                f = XKF + 4 * (i % 8)
                rd.append(f"ds_read_b128 {v(f, 4)}, {v(aM[sx & 3])} offset:{bk * UNIT + (sx >> 2) * 128}")
                acc = v(XS[bk], 16)
                m = f"v_mfma_f32_32x32x16_bf16 {acc}, {v(f, 4)}, {v(XQ[0] + 4 * sx, 4)}, {'0' if sx == 0 else acc}"
                if i % 2 == 0:
                    m = f"@need {v(XKF + 4 * ((i + 1) % 8), 4)}\n" + m
                mf.append(m)
        AH = 6
        for x in rd[:AH]:
            a(x)
        a(f"s_and_b32 {s(sT0)}, {s(sN)}, 7")
        a(f"s_cmp_eq_u32 {s(sT0)}, 0")
        a(f"s_cbranch_scc1 R_xinit\nK_xinit:")
        rb = ["R_xinit:"]
        for r in (vM, vTH, vMe, vTHe):
            rb.append(f"v_mov_b32 {v(r)}, 0xff800000")
        for r in (vL0, vL1, vLe):
            rb.append(f"v_mov_b32 {v(r)}, 0")
        for r in (vF, vFe):
            rb.append(f"v_mov_b32 {v(r)}, 1.0")
        rb += [f"s_cmp_eq_u32 {s(sN)}, 0", "s_cbranch_scc1 K_xinit", f"s_mov_b32 {s(sPEW)}, {PEW[1]}"]
        for r in range(48):
            rb.append(f"v_mov_b32 {v(XQ[0] + r)}, {v(XQ[1] + r)}")
        rb += ["s_nop 1", "s_branch K_xinit"]
        rare_blocks.append(rb)
        for i in range(14):
            a(mf[i])
            if i + AH < 24:
                a(rd[i + AH])
        st = (vM, vNM, vTH, vAL)
        smA = softmax(XS[0], 16, XP[0], st, [vL0, vL1], aPw, aAl, 0, 0, False)
        main = []
        for i in range(14, 24):
            item = mf[i]
            if i + AH < 24:
                item += "\n" + rd[i + AH]
            main.append(item)
        for x in interleave(main, smA):
            a(x)
        smB = softmax(XS[1], 16, XP[1], st, [vL0, vL1], aPw, aAl, 2048, 128, False)
        labx, labj = a.newlabel("xe"), a.newlabel("xj")
        a(f"s_cmp_eq_u32 {s(sW)}, {s(sPEW)}")
        a(f"s_cbranch_scc1 {labx}")
        for x in smB:
            a(x)
        a(f"s_branch {labj}")
        a.label(labx)
        smB = softmax(XS[1], 16, XP[1], st, [vL0, vL1], aPw, aAl, 2048, 128, False)
        rd, mf = [], []
        for bk in range(2):
            for sp in range(6):
                for kt in range(2):
                    i = 12 * bk + 2 * sp + kt
                    f = XKF + 4 * (i % 8)
                    rd.append(f"ds_read_b128 {v(f, 4)}, {v(aE[sp & 1])} offset:{bk * UNIT + 16 * kt * 384 + (sp >> 1) * 128}")
                    acc = v(XSE[bk] + 4 * kt, 4)
                    m = f"v_mfma_f32_16x16x32_bf16 {acc}, {v(f, 4)}, {v(XQE + 4 * sp, 4)}, {'0' if sp == 0 else acc}"
                    if i % 2 == 0:
                        m = f"@need {v(XKF + 4 * ((i + 1) % 8), 4)}\n" + m
                    mf.append(m)
        for x in rd[:AH]:
            a(x)
        main = []
        for i in range(24):
            item = mf[i]
            if i + AH < 24:
                item += "\n" + rd[i + AH]
            main.append(item)
        for x in interleave(main, smB):
            a(x)
        ste = (vMe, vNMe, vTHe, vALe)
        for bk in range(2):
            for x in softmax(XSE[bk], 8, XP[0] + 4 * bk, ste, [vLe], aPe, aAe, bk * 1024,
                             ALPHAE - SMALL + bk * 64, True):
                a(x)
        a.label(labj)
        a(f"s_and_b32 {s(sT0)}, {s(sN)}, 7")
        a(f"s_cmp_eq_u32 {s(sT0)}, 7")
        a(f"s_cbranch_scc1 R_xfin\nK_xfin:")
        rb = ["R_xfin:",
              f"v_add_f32 {v(vL0)}, {v(vL0)}, {v(vL1)}",
              f"v_mov_b32 {T[3]}, {v(vL0)}",
              f"v_permlane32_swap_b32 {v(vL0)}, {T[3]}",
              f"v_add_f32 {v(vL0)}, {v(vL0)}, {T[3]}",
              f"v_rcp_f32 {v(vL0)}, {v(vL0)}",
              f"ds_write_b32 {T[4]}, {v(vL0)} offset:{LSUM - ALPHA}",
              f"s_cmp_lg_u32 {s(sW)}, {s(sPEW)}",
              "s_cbranch_scc1 K_xfin",
              f"v_mov_b32 {T[3]}, {v(vLe)}",
              f"v_permlane32_swap_b32 {v(vLe)}, {T[3]}",
              f"v_add_f32 {v(vLe)}, {v(vLe)}, {T[3]}",
              f"v_mov_b32 {T[3]}, {v(vLe)}",
              f"v_permlane16_swap_b32 {v(vLe)}, {T[3]}",
              f"v_add_f32 {v(vLe)}, {v(vLe)}, {T[3]}",
              f"v_rcp_f32 {v(vLe)}, {v(vLe)}",
              f"ds_write_b32 {T[5]}, {v(vLe)} offset:{LE - SMALL}",
              "s_branch K_xfin"]
        rare_blocks.append(rb)
        dstamp(9)
        for x in kv_pair("K"):
            a(x)
        if cfg.get("wopf", 1):
            a(f"s_cmp_ge_u32 {s(sN)}, 14")
            a(f"s_cbranch_scc1 R_wopf\nK_wopf:")
            rb = ["R_wopf:",
                  f"s_cmp_eq_u32 {s(sBLK)}, 0",
                  f"s_cselect_b64 {s(SDBG, 2)}, {s(sP + 8, 2)}, {s(sP + 18, 2)}",
                  f"s_and_b32 {s(SDBG + 1)}, {s(SDBG + 1)}, 0xffff",
                  f"s_mov_b32 {s(SDBG + 2)}, {6144 * 640 * 2}",
                  f"s_mov_b32 {s(SDBG + 3)}, 0x20000",
                  f"s_sub_u32 {s(sT0)}, 15, {s(sN)}",
                  f"s_lshl_b32 {s(sT0)}, {s(sT0)}, 2",
                  f"s_and_b32 {s(sT1)}, s2, 3",
                  f"s_add_u32 {s(sT0)}, {s(sT0)}, {s(sT1)}",
                  f"s_mul_i32 {s(sT0)}, {s(sT0)}, {768 * 1280}",
                  f"s_lshr_b32 {s(sT1)}, s2, 3",
                  f"s_lshl_b32 {s(sT1)}, {s(sT1)}, 2",
                  f"s_add_u32 {s(sT1)}, {s(sT1)}, {s(sW)}",
                  f"s_mul_i32 {s(sT1)}, {s(sT1)}, {60 * 128}",
                  f"s_add_u32 {s(sT0)}, {s(sT0)}, {s(sT1)}",
                  f"v_min_u32 {T[0]}, 59, {L}",
                  f"v_lshlrev_b32 {T[0]}, 7, {T[0]}",
                  f"buffer_load_dword {T[1]}, {T[0]}, {s(SDBG, 4)}, {s(sT0)} offen",
                  "s_branch K_wopf"]
            rare_blocks.append(rb)
        dstamp(10)
        a(f"s_add_u32 {s(sD)}, {s(sD)}, 1")
        a(f"s_cmp_eq_u32 {s(sD)}, 3")
        a(f"s_cselect_b32 {s(sD)}, 0, {s(sD)}")
        a(f"s_cselect_b32 {s(sT1)}, -2, 1")
        a(f"s_mul_i32 {s(sT1)}, {s(sT1)}, {PAIR}")
        for r in aM + aE[:2]:
            a(f"v_add_u32 {v(r)}, {s(sT1)}, {v(r)}")
        for x in flip_bufs():
            a(x)
        a(f"s_add_u32 {s(sN)}, {s(sN)}, 1")
        a(f"s_cmp_lt_u32 {s(sN)}, 16")
        a("s_waitcnt lgkmcnt(0)")
        a(f"s_cbranch_scc1 {K}_xloop")
        a("s_barrier")
        dstamp(8)

    def rescale(al, small):
        lab = a.newlabel("rs")
        rare_blocks.append([f"R_{lab}:", f"v_mov_b32 {v(vt0)}, {v(al)}",
                            f"s_call_b64 {s(sRET, 2)}, {K}_rs{'e' if small else ''}", f"s_branch K_{lab}"])
        return [f"v_cmp_neq_f32 vcc, 1.0, {v(al)}", f"s_cbranch_vccnz R_{lab}\nK_{lab}:"]

    def rs_rare(small):
        regs = range(YOE, YOE + 48) if small else range(YO, YO + 96)
        rb = [f"{K}_rs{'e' if small else ''}:", "s_nop 15"]
        for r in regs:
            rb.append(f"v_mul_f32 {v(r)}, {v(vt0)}, {v(r)}")
        rb += ["s_nop 1", f"s_setpc_b64 {s(sRET, 2)}"]
        return rb

    def att_y():
        a(f"v_and_b32 {T[2]}, 15, {L}")
        a(f"v_lshlrev_b32 {T[2]}, 4, {T[2]}")
        a(f"v_lshrrev_b32 {T[3]}, 5, {L}")
        a(f"v_lshl_add_u32 {T[2]}, {T[3]}, 9, {T[2]}")
        a(f"v_bfe_u32 {T[3]}, {L}, 4, 1")
        a(f"v_lshl_add_u32 {T[2]}, {T[3]}, 3, {T[2]}")
        buf_init(PEWY[0])
        a(f"s_mov_b32 {s(sN)}, 0")
        a(f"s_mov_b32 {s(sD)}, {PAIR}")
        a("s_barrier")
        dstamp(8)
        for r in range(YO, YO + 144):
            a(f"v_mov_b32 {v(r)}, 0")
        a(f"s_mov_b32 {s(sN)}, 1")
        a.label(f"{K}_yloop")
        a(f"s_cmp_eq_u32 {s(sN)}, 9")
        a(f"s_cbranch_scc1 {K}_yw")
        a("s_waitcnt vmcnt(0)")
        a.label(f"{K}_yw")
        a("s_waitcnt vmcnt(12)")
        dstamp(7)
        a("s_barrier")
        dstamp(8)
        for x in kv_pair("V"):
            a(x)
        if cfg.get("nocomp"):
            a("s_branch K_yfin")
        for bk in range(2):
            a(f"ds_read_b32 {v(vAa[bk])}, {v(aAl)} offset:{128 * bk}")
        for i in range(4):
            a(f"ds_read_b128 {v(YP + 4 * i, 4)}, {v(aPw)} offset:{1024 * i}")
        rd, mf = [], []
        for bk in range(2):
            for s2 in range(2):
                for Tt in range(6):
                    i = 12 * bk + 6 * s2 + Tt
                    f = YVF + 4 * (i % 8)
                    off = bk * UNIT + 16 * s2 * 384 + (Tt >> 1) * 128
                    rd.append("\n".join(
                        f"ds_read_b64_tr_b16 {v(f + 2 * jj, 2)}, {v(aM[2 * (Tt & 1) + jj])} offset:{off}"
                        for jj in range(2)))
                    acc = v(YO + 16 * Tt, 16)
                    m = f"v_mfma_f32_32x32x16_bf16 {acc}, {v(f, 4)}, {v(YP + 8 * bk + 4 * s2, 4)}, {acc}"
                    if i % 2 == 0:
                        m = f"@need {v(YVF + 4 * ((i + 1) % 8), 4)}\n" + m
                    mf.append(m)
        AH = 5
        for x in rd[:AH]:
            a(x)
        for i in range(24):
            if i % 12 == 0:
                for x in rescale(vAa[i // 12], False):
                    a(x)
            a(mf[i])
            if i + AH < 24:
                a(rd[i + AH])
        lab = a.newlabel("ye")
        a(f"s_cmp_lg_u32 {s(sW)}, {s(sPEW)}")
        a(f"s_cbranch_scc1 {lab}")
        for bk in range(2):
            a(f"ds_read_b32 {v(vAeY[bk])}, {v(aAe)} offset:{ALPHAE - SMALL + bk * 64}")
            a(f"ds_read_b128 {v(YPE + 4 * bk, 4)}, {v(aPe)} offset:{bk * 1024}")
        rd, mf = [], []
        for bk in range(2):
            for dt in range(12):
                i = 12 * bk + dt
                f = YVF + 4 * (i % 8)
                rd.append("\n".join(
                    f"ds_read_b64_tr_b16 {v(f + 2 * jj, 2)}, {v(aE[dt & 3])} offset:{bk * UNIT + 16 * jj * 384 + (dt >> 2) * 128}"
                    for jj in range(2)))
                acc = v(YOE + 4 * dt, 4)
                m = f"v_mfma_f32_16x16x32_bf16 {acc}, {v(f, 4)}, {v(YPE + 4 * bk, 4)}, {acc}"
                if i % 2 == 0:
                    m = f"@need {v(YVF + 4 * ((i + 1) % 8), 4)}\n" + m
                mf.append(m)
        AH = 6
        for x in rd[:AH]:
            a(x)
        for i in range(24):
            if i % 12 == 0:
                for x in rescale(vAeY[i // 12], True):
                    a(x)
            a(mf[i])
            if i + AH < 24:
                a(rd[i + AH])
        a.label(lab)
        a(f"s_and_b32 {s(sT0)}, {s(sN)}, 7")
        a(f"s_cmp_eq_u32 {s(sT0)}, 0")
        a(f"s_cbranch_scc1 R_yfin\nK_yfin:")
        rb = ["R_yfin:",
              f"ds_read_b32 {v(vLi)}, {T[4]} offset:{LSUM - ALPHA}",
              f"ds_read_b32 {v(vLei)}, {T[5]} offset:{LE - SMALL}",
              "s_nop 7"]
        for fi in range(12):
            b0 = YO + 8 * fi
            d = YVF + 4 * (fi % 8)
            for e in range(8):
                rb.append(f"v_mul_f32 {v(b0 + e)}, {v(vLi)}, {v(b0 + e)}")
            for e in range(4):
                rb.append(f"v_cvt_pk_bf16_f32 {v(d + e)}, {v(b0 + 2 * e)}, {v(b0 + 2 * e + 1)}")
            if fi % 4 == 0:
                rb.append(f"s_add_u32 {s(sT0)}, {s(sOM)}, {(fi >> 2) * 36 * 4096}")
            rb.append(f"buffer_store_dwordx4 {v(d, 4)}, {v(aLin)}, {s(SWS, 4)}, {s(sT0)} offen offset:{1024 * (fi % 4)}{ONT}")
            for e in range(8):
                rb.append(f"v_mov_b32 {v(b0 + e)}, 0")
        rb += [f"s_add_u32 {s(sOM)}, {s(sOM)}, {48 * 36 * 4096}",
               "s_waitcnt lgkmcnt(0)",
               f"s_cmp_lg_u32 {s(sW)}, {s(sPEW)}",
               f"s_mov_b32 {s(sPEW)}, {PEWY[1]}",
               "s_cbranch_scc1 yfin2"]
        for dt in range(12):
            b0 = YOE + 4 * dt
            for e in range(4):
                rb.append(f"v_mul_f32 {v(b0 + e)}, {v(vLei)}, {v(b0 + e)}")
            rb.append(f"v_cvt_pk_bf16_f32 {v(b0)}, {v(b0)}, {v(b0 + 1)}")
            rb.append(f"v_cvt_pk_bf16_f32 {v(b0 + 1)}, {v(b0 + 2)}, {v(b0 + 3)}")
            if dt % 4 == 0:
                rb.append(f"s_add_u32 {s(sT0)}, {s(sOE)}, {(dt >> 2) * 36 * 4096}")
            rb.append(f"buffer_store_dwordx2 {v(b0, 2)}, {T[2]}, {s(SWS, 4)}, {s(sT0)} offen offset:{1024 * (dt & 3)}{ONT}")
        rb += ["yfin2:", f"s_add_u32 {s(sOE)}, {s(sOE)}, {48 * 36 * 4096}", "s_branch K_yfin"]
        rare_blocks.append(rb)
        for r in aM + aE:
            a(f"v_add_u32 {v(r)}, {s(sD)}, {v(r)}")
        a(f"s_sub_u32 {s(sD)}, 0, {s(sD)}")
        for x in flip_bufs():
            a(x)
        dstamp(9)
        a(f"s_add_u32 {s(sN)}, {s(sN)}, 1")
        a(f"s_cmp_lt_u32 {s(sN)}, 17")
        a("s_waitcnt lgkmcnt(0)")
        a(f"s_cbranch_scc1 {K}_yloop")

    for role in ("X", "Y"):
        if role == "Y":
            a.label(f"{K}_Y")
        if cfg.get("stamp"):
            T = T[:7]
        stamp(0)
        stamp(62, True)
        a(f"s_mov_b32 {s(sKC)}, 0")
        a(f"s_mov_b32 {s(sPI)}, 0")
        a(f"s_mul_i32 {s(sTP)}, {s(sHH)}, {cfg.get('krh', 2)}")
        a(f"s_mul_i32 {s(sT0)}, {s(sB)}, {cfg.get('krb', 1)}")
        a(f"s_add_u32 {s(sTP)}, {s(sTP)}, {s(sT0)}")
        a(f"s_and_b32 {s(sTP)}, {s(sTP)}, 7")
        a(f"s_mul_i32 {s(sG)}, {s(sTP)}, {PAIR}")
        a(f"s_add_u32 {s(sG)}, {s(sG)}, {s(sKV)}")
        a(f"s_add_u32 {s(sMI)}, {s(sM3)}, {KR if role == 'X' else VR}")
        if TOUCH:
            touch_setup(role)
            for x in touch(role, 2):
                a(x)
        for k in range(2):
            for x in stage_dma(k):
                a(x)
        if cfg.get("codepf", 1) and role == "Y":
            a(f"s_cmp_lg_u32 {s(sWV)}, 7")
            a(f"s_cbranch_scc1 {K}_nocpf")
            a(f"s_getpc_b64 {s(SDBG, 2)}")
            a.label(f"{K}_pc")
            a(f"s_sub_u32 {s(SDBG)}, {s(SDBG)}, {K}_pc-att_kernel")
            a(f"s_subb_u32 {s(SDBG + 1)}, {s(SDBG + 1)}, 0")
            a(f"s_and_b32 {s(SDBG + 1)}, {s(SDBG + 1)}, 0xffff")
            a(f"s_mov_b32 {s(SDBG + 2)}, {K}_end-att_kernel")
            a(f"s_mov_b32 {s(SDBG + 3)}, 0x20000")
            a(f"v_lshlrev_b32 {T[0]}, 7, {L}")
            for i in range(cfg.get("cpfn", 5)):
                a(f"s_mov_b32 {s(sT0)}, {8192 * i}")
                a(f"buffer_load_dword {v(vDUM)}, {T[0]}, {s(SDBG, 4)}, {s(sT0)} offen")
            a.label(f"{K}_nocpf")
        addr_setup(role)
        qp_phase(role)
        if role == "X":
            att_x()
        else:
            att_y()
        if cfg.get("stamp"):
            a("s_waitcnt vmcnt(0)")
            stamp(60)
            stamp(63, True)
            srd(a, SDBG, sP + 24, sP + 25, 0x10000000)
            a(f"s_lshl_b32 {s(sT0)}, s2, 3")
            a(f"s_add_u32 {s(sT0)}, {s(sT0)}, {s(sWV)}")
            a(f"s_lshl_b32 {s(sT0)}, {s(sT0)}, 8")
            a(f"s_add_u32 {s(sT0)}, {s(sT0)}, 0x4000000")
            a(f"v_lshlrev_b32 v7, 2, v0")
            a(f"buffer_store_dword v8, v7, {s(SDBG, 4)}, {s(sT0)} offen")
        a("s_endpgm")
        for rb in rare_blocks:
            for x in rb:
                a(x)
        rare_blocks.clear()
        for small in (False, True):
            for x in (sm_rare(small) if role == "X" else rs_rare(small)):
                a(x)
    a.label(f"{K}_end")
    a("s_endpgm")
```

```python
import numpy as np

from asmlib import v, s, interleave
from lanecalc import LC, mask_of, emit_mask
from common import *

UNIT = 12288
PAIR = 24576
KR = 0
VR = 3 * PAIR
PR = 5 * PAIR
STG = 2 * PAIR
SW = PAIR
XST = PR
SX_ = 9216
PBLK = 9216
PBUF = 2 * PBLK
SMALL = PR + 2 * PBUF
ALPHA = SMALL
LINV = SMALL + 2560
QIMG = STG
LDS_K1 = 163840
OOB = 0x7fff0000
THR = 256.0


def gen_k1(a, cfg):
    KVNT = " nt"
    WNT = " nt" if cfg.get("wnt", 1) else ""
    XNT = " nt" if cfg.get("xnt", 0) else ""
    ONT = " nt" if cfg.get("ont", 0) else ""
    TOUCH = cfg.get("touch", 1)
    SX, SWQ, SKV, SWS = 8, 12, 16, 24
    sBLK, sB, sH, sHH, sWV, sW, sKV, sC = 28, 29, 30, 31, 32, 33, 34, 35
    sWOFF, sX0, sXE, sTCH, sT0, sT1, sT2, sTP = 36, 37, 38, 39, 40, 41, 42, 43
    sM3, sMW, sMX, sOB, sRING, sRLIM = 44, 45, 46, 47, 48, 49
    sN, sG, sMI, sKD, sVD, sPD, sAD, sSL, sBIG, sKC, sPI = 50, 51, 52, 53, 54, 55, 56, 57, 58, 59, 62
    sXLO, sYLO, sYHI, sDT0 = 63, 92, 93, 20
    sRET = 60
    SDBG = 96
    sP = 64
    L = "v0"
    T = [f"v{i}" for i in range(1, 9)]
    pKV, pW, pX = [9, 10, 11], [12, 13, 14], 15
    aWe = {(i, jj): 16 + 2 * i + jj for i in range(3) for jj in range(2)}
    aXe, aLin = 22, 23
    aK, aV = [24, 25], [26, 27, 28]
    aPx, aPy, aAx, aAy, aAq, aL, vOst = 29, 30, 31, 32, 33, 34, 35
    vL, vBS, vPD = [36, 37, 38], [39, 40, 41], [42, 43, 44]
    vTH, vFL, vONE = 45, 46, 47
    E = [48, 156]
    vTCH, vDUM = 36, 37
    QACC, QB, QBA, QA = 56, 164, 200, [208, 220]
    XQ = 184
    XS, XKF, XNM, XPK = [56, 80], 104, 136, [148, 152]
    YACC = 56
    YPF = {2: 128, 3: 164}
    YVF = {2: 160, 3: 196}

    K = "k1"
    a.label("att_kernel")
    a("s_cmp_ge_u32 s2, 256")
    a(f"s_cbranch_scc1 {K}_end")
    a(f"s_load_dwordx16 {s(sP, 16)}, s[0:1], 0")
    a(f"s_load_dwordx8 {s(sP + 16, 8)}, s[0:1], 64")
    a(f"s_load_dwordx2 {s(sP + 24, 2)}, s[0:1], 96")
    c = LC(a)
    c.shr(T[0], 6, "v0")
    a(f"v_readfirstlane_b32 {s(sWV)}, {T[0]}")
    c.and_("v0", 63, "v0")
    c.set_s(s(sWV), np.arange(8))
    a(f"s_and_b32 {s(sW)}, {s(sWV)}, 3")
    c.set_s(s(sW), np.arange(8) & 3)
    a(f"""
    s_bfe_u32 {s(sBLK)}, s2, 0x10002
    s_bfe_u32 {s(sB)}, s2, 0x30003
    s_and_b32 {s(sT0)}, s2, 3
    s_lshr_b32 {s(sHH)}, s2, 6
    s_lshl_b32 {s(sT0)}, {s(sT0)}, 2
    s_add_u32 {s(sH)}, {s(sT0)}, {s(sHH)}
    s_mov_b32 {s(sC)}, {hex(f32(CSCALE))}
    s_mul_i32 {s(sM3)}, {s(sW)}, 3072
    s_mul_i32 {s(sMW)}, {s(sWV)}, 3072
    s_lshl_b32 {s(sMX)}, {s(sWV)}, 10
    s_lshl_b32 {s(sT0)}, {s(sB)}, 5
    s_add_u32 {s(sT0)}, {s(sT0)}, {s(sH)}
    s_mul_i32 {s(sKV)}, {s(sT0)}, 196608
    s_lshr_b32 {s(sT0)}, {s(sWV)}, 2
    s_lshl_b32 {s(sT0)}, {s(sT0)}, 4
    s_add_u32 {s(sT0)}, {s(sT0)}, {s(sH)}
    s_mul_i32 {s(sWOFF)}, {s(sT0)}, 384
    s_mul_i32 {s(sT1)}, {s(sB)}, 144
    s_lshl_b32 {s(sT2)}, {s(sWV)}, 4
    s_add_u32 {s(sT2)}, {s(sT2)}, {s(sT1)}
    s_mul_i32 {s(sX0)}, {s(sT2)}, 1280
    s_add_u32 {s(sT2)}, {s(sT1)}, 128
    s_mul_i32 {s(sXE)}, {s(sT2)}, 1280
    s_mov_b32 {s(sKC)}, 0
    s_mov_b32 {s(sPI)}, 0
    s_mul_i32 {s(sTP)}, {s(sHH)}, 2
    s_add_u32 {s(sTP)}, {s(sTP)}, {s(sB)}
    s_and_b32 {s(sTP)}, {s(sTP)}, 7
    s_mul_i32 {s(sG)}, {s(sTP)}, {PAIR}
    s_add_u32 {s(sG)}, {s(sG)}, {s(sKV)}
    s_cmp_ge_u32 {s(sWV)}, 4
    s_cselect_b32 {s(sRING)}, 2, 3
    s_cselect_b32 {s(sMI)}, {VR}, 0
    s_mul_i32 {s(sRING)}, {s(sRING)}, {PAIR}
    s_add_u32 {s(sRLIM)}, {s(sMI)}, {s(sRING)}
    s_add_u32 {s(sMI)}, {s(sMI)}, {s(sM3)}
    """)
    c.set_s(s(sM3), (np.arange(8) & 3) * 3072)
    fr, fc, fg = "v48", "v49", "v50"
    c.bfe(fr, L, 2, 2)
    c.and_(fc, 3, L)
    c.shr(fg, 4, L)
    r_, c_, g_ = (LANE >> 2) & 3, LANE & 3, LANE >> 4
    q16 = LANE & 15
    row, chk, sub = "v51", "v52", "v53"
    t1, t2, t3 = T[0], T[1], T[2]
    for j in range(3):
        c.add(T[3], 64 * j, L)
        c.shr(T[4], 3, T[3])
        c.mul24(T[4], 11, T[4])
        c.shr(T[4], 5, T[4])
        c.mul24(T[5], 24, T[4])
        c.sub(T[5], T[3], T[5])
        c.mov(T[6], s(sW))
        c.lshl_add(row, T[6], 3, T[4])
        emit_mask(c, t3, row, t1, t2)
        c.xor(T[6], L, t3)
        c.lshl_add(v(pKV[j]), T[6], 4, s(sM3))
        c.xor(T[5], T[5], t3)
        c.mul24(T[6], 12288, row)
        c.lshl_add(T[6], T[5], 4, T[6])
        c.add(v(pW[j]), (-1024 * j) & 0xFFFFFFFF if j else 0, T[6])
        p = 64 * j + LANE
        rw = 8 * W4 + p // 24
        c.check(v(pKV[j]), rw * 384 + (((p % 24) ^ mask_of(rw)) * 16) - 1024 * j)
        c.check(v(pW[j]), rw * 12288 + (((p % 24) ^ mask_of(rw)) * 16) - 1024 * j)
    c.sub(T[3], 0, fg)
    c.and_(T[3], 3, T[3])
    c.xor(T[3], fc, T[3])
    c.shr(T[4], 2, L)
    c.mul24(T[4], 1280, T[4])
    c.lshl_add(v(pX), T[3], 4, T[4])
    c.check(v(pX), (LANE >> 2) * 1280 + (((LANE & 3) ^ ((-(LANE >> 4)) & 3)) << 4))
    a(f"""
    v_cmp_le_u32 vcc, 24, {L}
    v_cndmask_b32 {T[0]}, 0, 1, vcc
    v_mul_u32_u24 {T[1]}, 24, {T[0]}
    v_sub_u32 {T[1]}, {L}, {T[1]}
    v_mul_u32_u24 {T[2]}, 11, {T[1]}
    v_lshrrev_b32 {T[2]}, 5, {T[2]}
    v_mul_u32_u24 {T[3]}, 3, {T[2]}
    v_sub_u32 {T[3]}, {T[1]}, {T[3]}
    v_mul_u32_u24 {T[2]}, {8 * 12288}, {T[2]}
    v_mul_u32_u24 {T[0]}, 6144, {T[0]}
    v_lshl_add_u32 {T[2]}, {T[3]}, 7, {T[2]}
    v_add_u32 {T[2]}, {T[0]}, {T[2]}
    v_mul_u32_u24 {T[4]}, 1280, {L}
    s_cmp_ge_u32 {s(sWV)}, 4
    s_cselect_b32 {s(sT0)}, 36, 48
    s_cselect_b64 vcc, -1, 0
    v_cndmask_b32 {T[2]}, {T[2]}, {T[4]}, vcc
    v_mov_b32 {T[3]}, 0x7fffffff
    v_cmp_gt_u32 vcc, {s(sT0)}, {L}
    v_cndmask_b32 {v(vTCH)}, {T[3]}, {T[2]}, vcc
    s_lshl_b32 {s(sT0)}, {s(sW)}, 6
    s_add_u32 {s(sT0)}, {s(sT0)}, {s(sB)}
    s_mul_i32 {s(sT0)}, {s(sT0)}, 12288
    s_add_u32 {s(sT0)}, {s(sT0)}, {s(sWOFF)}
    s_mul_i32 {s(sT2)}, {s(sHH)}, 36
    s_add_u32 {s(sT1)}, {s(sT1)}, {s(sT2)}
    s_mul_i32 {s(sT1)}, {s(sT1)}, 1280
    s_lshl_b32 {s(sT2)}, {s(sW)}, 7
    s_add_u32 {s(sT1)}, {s(sT1)}, {s(sT2)}
    s_cmp_ge_u32 {s(sWV)}, 4
    s_cselect_b32 {s(sTCH)}, {s(sT1)}, {s(sT0)}
    """)
    a("s_waitcnt lgkmcnt(0)")
    a(f"s_cmp_eq_u32 {s(sBLK)}, 0")
    for i in range(5):
        a(f"s_cselect_b64 {s(sP + 2 * i, 2)}, {s(sP + 2 * i, 2)}, {s(sP + 10 + 2 * i, 2)}")
    a(f"s_cmp_ge_u32 {s(sWV)}, 4")
    a(f"s_cselect_b64 {s(sP + 2, 2)}, {s(sP + 4, 2)}, {s(sP + 2, 2)}")
    srd(a, SX, sP + 0, sP + 1, 8 * 144 * 640 * 2)
    srd(a, SKV, sP + 2, sP + 3, 8 * 32 * 512 * 192 * 2)
    srd(a, SWQ, sP + 6, sP + 7, 640 * 6144 * 2)
    srd(a, SWS, sP + 24, sP + 25, O_BYTES)

    rare_blocks = []

    def stamp(i, real=False):
        if not cfg.get("stamp"):
            return
        a(f"{'s_memrealtime' if real else 's_memtime'} s[90:91]")
        a("s_waitcnt lgkmcnt(0)")
        a(f"v_writelane_b32 v8, s90, {i}")

    def dstamp(base):
        if not cfg.get("stamp"):
            return
        a("s_memtime s[90:91]")
        a("s_memrealtime s[94:95]")
        a(f"s_mul_i32 {s(sT0)}, {s(sN)}, 3")
        a(f"s_add_u32 m0, {s(sT0)}, {base}")
        a("s_waitcnt lgkmcnt(0)")
        a(f"s_cmp_eq_u32 {s(sWV)}, 7")
        a("s_cselect_b32 s90, s94, s90")
        a("v_writelane_b32 v8, s90, m0")

    def touch(role, n):
        lab = a.newlabel("KS_t")
        stride = 64 * 12288 if role == "X" else 128
        sr, nt = (SWQ, WNT) if role == "X" else (SX, XNT)
        return ["\n".join([f"s_cmp_ge_u32 {s(sW)}, {n}",
                           f"s_cbranch_scc1 {lab}",
                           f"buffer_load_dword {v(vDUM)}, {v(vTCH)}, {s(sr, 4)}, {s(sTCH)} offen{nt}",
                           f"{lab}:",
                           f"s_add_u32 {s(sTCH)}, {s(sTCH)}, {n * stride}"])]

    def kv_pair():
        out = []
        for hf in range(2):
            out.append(f"s_add_u32 m0, {s(sMI)}, {hf * UNIT}")
            out.append(f"s_add_u32 {s(sT0)}, {s(sG)}, {hf * UNIT}")
            for j in range(3):
                off = f" offset:{1024 * j}" if j else ""
                out.append(f"buffer_load_dwordx4 {v(pKV[j])}, {s(SKV, 4)}, {s(sT0)} offen{off}{KVNT} lds")
        out += [f"s_add_u32 {s(sPI)}, {s(sPI)}, 1",
                f"s_add_u32 {s(sTP)}, {s(sTP)}, 1",
                f"s_and_b32 {s(sTP)}, {s(sTP)}, 7",
                f"s_mul_i32 {s(sG)}, {s(sTP)}, {PAIR}",
                f"s_add_u32 {s(sG)}, {s(sG)}, {s(sKV)}",
                f"s_cmp_ge_u32 {s(sPI)}, 8",
                f"s_cselect_b32 {s(sT0)}, {16 * 196608}, 0",
                f"s_add_u32 {s(sG)}, {s(sG)}, {s(sT0)}",
                f"s_cmp_ge_u32 {s(sPI)}, 16",
                f"s_cselect_b32 {s(sG)}, {hex(OOB)}, {s(sG)}",
                f"s_add_u32 {s(sMI)}, {s(sMI)}, {PAIR}",
                f"s_cmp_ge_u32 {s(sMI)}, {s(sRLIM)}",
                f"s_cselect_b32 {s(sT0)}, {s(sRING)}, 0",
                f"s_sub_u32 {s(sMI)}, {s(sMI)}, {s(sT0)}"]
        return out

    def stage_dma(k):
        st = STG + (k % 3) * SW
        sx = XST + (k % 3) * SX_
        lab = a.newlabel("KS_skip")
        out = ["\n".join([f"s_cmp_lg_u32 {s(sWV)}, {s(sKC)}",
                          f"s_mov_b32 m0, {sx + 8192}",
                          f"s_cbranch_scc1 {lab}",
                          f"buffer_load_dwordx4 {v(pX)}, {s(SX, 4)}, {s(sXE)} offen{XNT} lds",
                          f"{lab}:"]),
               f"s_add_u32 m0, {s(sMW)}, {st}",
               f"s_add_u32 {s(sXE)}, {s(sXE)}, 64"]
        for j in range(3):
            off = f" offset:{1024 * j}" if j else ""
            out.append(f"buffer_load_dwordx4 {v(pW[j])}, {s(SWQ, 4)}, {s(sWOFF)} offen{off}{WNT} lds")
        out += [f"s_add_u32 m0, {s(sMX)}, {sx}",
                f"s_add_u32 {s(sWOFF)}, {s(sWOFF)}, {32 * 12288}",
                f"buffer_load_dwordx4 {v(pX)}, {s(SX, 4)}, {s(sX0)} offen{XNT} lds",
                f"s_add_u32 {s(sX0)}, {s(sX0)}, 64",
                f"s_add_u32 {s(sKC)}, {s(sKC)}, 1",
                f"s_and_b32 {s(sKC)}, {s(sKC)}, 7"]
        return out

    def addr_setup():
        cc = c
        cc.and_(sub, 1, fc)
        cc.mov(T[6], s(sWV))
        cc.shr(T[6], 2, T[6])
        cc.mul24(T[6], 12288, T[6])
        for i in range(3):
            cc.mov(T[4], s(sW))
            cc.mul24(T[4], 6, T[4])
            cc.shr(T[5], 1, fc)
            cc.add(T[4], T[4], T[5])
            cc.add(chk, 2 * i, T[4])
            for jj in range(2):
                cc.lshl_or(row, fg, 3, fr)
                if jj:
                    cc.add(row, 4, row)
                tr_addr(cc, T[3], row, chk, sub, STG, t1, t2, t3)
                cc.add(v(aWe[i, jj]), T[6], T[3])
                dt = 3 * W4 + i
                cc.check(v(aWe[i, jj]), tr_ref(8 * g_ + 4 * jj + r_, 2 * dt + (c_ >> 1), c_ & 1, STG) + (WV >> 2) * 12288)
        cc.sub(T[4], 0, fr)
        cc.and_(T[4], 3, T[4])
        cc.xor(T[6], T[4], fg)
        cc.and_(T[5], 15, L)
        cc.shl(T[5], 6, T[5])
        cc.lshl_add(T[6], T[6], 4, T[5])
        cc.add(v(aXe), XST, T[6])
        cc.check(v(aXe), XST + q16 * 64 + ((g_ ^ ((-(q16 >> 2)) & 3)) << 4))
        cc.shl(v(aLin), 4, L)
        cc.and_(row, 15, L)
        for p in range(2):
            cc.or_(chk, 4 * p, fg)
            tr_addr(cc, v(aK[p]), row, chk, None, KR, t1, t2, t3)
            cc.check(v(aK[p]), tr_ref(q16, 4 * p + g_, 0, KR))
        a(f"""
        s_lshr_b32 {s(sT0)}, {s(sWV)}, 2
        s_mul_i32 {s(sT0)}, {s(sT0)}, 3
        s_add_u32 {s(sT0)}, {s(sT0)}, 6
        s_lshl_b32 {s(sT1)}, {s(sW)}, 1
        s_cmp_eq_u32 {s(sW)}, 3
        s_cselect_b32 {s(sDT0)}, {s(sT0)}, {s(sT1)}
        """)
        dt0 = np.where((np.arange(8) & 3) == 3, 6 + 3 * (np.arange(8) >> 2), 2 * (np.arange(8) & 3))
        cc.set_s(s(sDT0), dt0)
        cc.and_(sub, 1, fc)
        cc.lshl_or(row, fg, 2, fr)
        for i in range(3):
            cc.mov(T[4], s(sDT0))
            cc.shl(T[4], 1, T[4])
            cc.shr(T[5], 1, fc)
            cc.add(T[4], T[4], T[5])
            cc.add(chk, 2 * i, T[4])
            tr_addr(cc, v(aV[i]), row, chk, sub, VR, t1, t2, t3)
            cc.check(v(aV[i]), tr_ref(4 * g_ + r_, 2 * (dt0.reshape(8, 1) + i) + (c_ >> 1), c_ & 1, VR))
        cc.add(v(aPy), PR, v(aLin))
        cc.add(v(aPx), s(sM3), v(aPy))
        a(f"v_subrev_u32 {T[4]}, 16, {L}")
        a(f"v_cmp_gt_u32 vcc, 48, {L}")
        a(f"v_cndmask_b32 {T[4]}, {T[4]}, {L}, vcc")
        a(f"s_mul_i32 {s(sT0)}, {s(sW)}, 192")
        a(f"s_add_u32 {s(sT0)}, {s(sT0)}, {ALPHA}")
        a(f"v_lshl_add_u32 {v(aAx)}, {T[4]}, 2, {s(sT0)}")
        a(f"v_min_u32 {T[4]}, 35, {L}")
        a(f"v_lshlrev_b32 {T[4]}, 4, {T[4]}")
        a(f"v_add_u32 {v(aAy)}, {ALPHA}, {T[4]}")
        a(f"v_and_b32 {T[4]}, 15, {L}")
        a(f"v_lshlrev_b32 {T[5]}, 2, {T[4]}")
        a(f"v_add_u32 {v(aAq)}, {ALPHA}, {T[5]}")
        a(f"v_add_u32 {v(aL)}, {LINV}, {T[5]}")
        a(f"v_lshlrev_b32 {T[4]}, 4, {T[4]}")
        a(f"v_lshrrev_b32 {T[5]}, 5, {L}")
        a(f"v_lshl_add_u32 {T[4]}, {T[5]}, 9, {T[4]}")
        a(f"v_bfe_u32 {T[5]}, {L}, 4, 1")
        a(f"v_lshl_add_u32 {v(vOst)}, {T[5]}, 3, {T[4]}")
        a(f"""
        s_mul_i32 {s(sT0)}, {s(sBLK)}, 96
        s_mul_i32 {s(sT1)}, {s(sH)}, 3
        s_add_u32 {s(sT0)}, {s(sT0)}, {s(sT1)}
        s_mul_i32 {s(sOB)}, {s(sT0)}, {36 * 4096}
        """)

    def qp_phase(role):
        def regB(k, q):
            return QBA + 4 * (q - 7) if (q >= 7 and k & 1) else QB + 4 * q

        def rdA(k, i):
            return [f"ds_read_b64_tr_b16 {v(QA[k & 1] + 4 * i + 2 * jj, 2)}, {v(aWe[i, jj])} offset:{(k % 3) * SW}"
                    for jj in range(2)]

        def rdB(k, q):
            return f"ds_read_b128 {v(regB(k, q), 4)}, {v(aXe)} offset:{(k % 3) * SX_ + q * 1024}"

        def mf(k, q, i):
            acc = v(QACC + 4 * (9 * i + q), 4)
            return f"v_mfma_f32_16x16x32_bf16 {acc}, {v(QA[k & 1] + 4 * i, 4)}, {v(regB(k, q), 4)}, {acc}"

        def slot():
            l1, l2 = a.newlabel("KS_s"), a.newlabel("KS_s")
            o = [f"s_mov_b32 {s(sBIG)}, 0",
                 f"s_cmp_ge_u32 {s(sSL)}, 2",
                 f"s_cbranch_scc1 {l1}"]
            if TOUCH:
                o += touch(role, 3)
            o.append(f"{l1}:")
            if role == "X":
                o += [f"s_and_b32 {s(sT0)}, {s(sSL)}, 6",
                      f"s_cmp_lg_u32 {s(sT0)}, 2",
                      f"s_cbranch_scc1 {l2}"] + kv_pair() + [f"s_mov_b32 {s(sBIG)}, 1", f"{l2}:"]
            o.append(f"s_add_u32 {s(sSL)}, {s(sSL)}, 1")
            return ["\n".join(o)]

        def iteration(k, in_loop):
            if k <= 19:
                if in_loop and role == "X" and k % 3 != 0:
                    lab = a.newlabel("KS_w")
                    a(f"s_cmp_eq_u32 {s(sBIG)}, 1")
                    a(f"s_cbranch_scc1 {lab}")
                    a("s_waitcnt vmcnt(4)")
                    a.label(lab)
                    a("s_waitcnt vmcnt(10)")
                else:
                    a("s_waitcnt vmcnt(4)")
            else:
                a("s_waitcnt vmcnt(0)")
            a("s_barrier")
            if k in (0, 19):
                stamp(1 + (0, 19).index(k))
            dma = stage_dma(k + 2) if k <= 18 else []
            if k == 0 and TOUCH:
                dma += touch(role, 3)
            if in_loop and k % 3 == 0:
                dma += slot()
            early = rdA(k, 0) + rdA(k, 1) + rdA(k, 2) + [rdB(k, 7), rdB(k, 8)]
            if role == "Y":
                for x in dma:
                    a(x)
            for q in range(9):
                for i in range(3):
                    if k:
                        a(mf(k - 1, q, i))
                    if k < 20 and i == 0 and q < 8:
                        a(early[q])
                if k < 20 and q < 7:
                    a(rdB(k, q))
            if role == "X":
                for x in dma:
                    a(x)
            if k < 20:
                a("s_waitcnt lgkmcnt(0)")

        a(f"s_mov_b32 {s(sSL)}, 0")
        a(f"s_mov_b32 {s(sBIG)}, 0")
        iteration(0, False)
        a.label(f"{K}_qp{role}")
        for k in range(1, 7):
            iteration(k, True)
        a(f"s_cmp_lt_u32 {s(sSL)}, 6")
        a(f"s_cbranch_scc1 {K}_qp{role}")
        iteration(19, False)

    def qp_finish():
        a("s_waitcnt vmcnt(0)")
        a("s_barrier")
        a(f"v_and_b32 {T[0]}, 15, {L}")
        a(f"v_lshlrev_b32 {T[0]}, 4, {T[0]}")
        a(f"v_lshrrev_b32 {T[1]}, 5, {L}")
        a(f"v_lshl_add_u32 {T[0]}, {T[1]}, 8, {T[0]}")
        a(f"v_bfe_u32 {T[1]}, {L}, 4, 1")
        a(f"v_lshl_add_u32 {T[0]}, {T[1]}, 3, {T[0]}")
        a(f"s_lshr_b32 {s(sT0)}, {s(sWV)}, 2")
        a(f"s_mul_i32 {s(sT0)}, {s(sT0)}, 55296")
        a(f"s_mul_i32 {s(sT1)}, {s(sW)}, 1536")
        a(f"s_add_u32 {s(sT0)}, {s(sT0)}, {s(sT1)}")
        a(f"s_add_u32 {s(sT0)}, {s(sT0)}, {QIMG}")
        a(f"v_add_u32 {T[0]}, {s(sT0)}, {T[0]}")
        k = 19

        def regB(q):
            return QBA + 4 * (q - 7) if q >= 7 else QB + 4 * q

        def post(q):
            o = []
            for i in range(3):
                b0 = QACC + 4 * (9 * i + q)
                for e in range(4):
                    o.append(f"v_mul_f32 {v(b0 + e)}, {s(sC)}, {v(b0 + e)}")
                o.append(f"v_cvt_pk_bf16_f32 {v(b0)}, {v(b0)}, {v(b0 + 1)}")
                o.append(f"v_cvt_pk_bf16_f32 {v(b0 + 1)}, {v(b0 + 2)}, {v(b0 + 3)}")
                o.append(f"ds_write_b64 {T[0]}, {v(b0, 2)} offset:{q * 6144 + i * 512}")
            return o

        for q in range(9):
            for i in range(3):
                acc = v(QACC + 4 * (9 * i + q), 4)
                a(f"v_mfma_f32_16x16x32_bf16 {acc}, {v(QA[1] + 4 * i, 4)}, {v(regB(q), 4)}, {acc}")
        for q in range(9):
            for x in post(q):
                a(x)
        a("s_waitcnt lgkmcnt(0)")
        stamp(6)
        a("s_barrier")
        a(f"s_lshr_b32 {s(sT0)}, {s(sWV)}, 2")
        a(f"s_mul_i32 {s(sT0)}, {s(sT0)}, 55296")
        a(f"s_min_u32 {s(sT1)}, {s(sW)}, 2")
        a(f"s_mul_i32 {s(sT1)}, {s(sT1)}, {3 * 6144}")
        a(f"s_add_u32 {s(sT0)}, {s(sT0)}, {s(sT1)}")
        a(f"s_add_u32 {s(sT0)}, {s(sT0)}, {QIMG}")
        a(f"v_add_u32 {T[0]}, {s(sT0)}, {v(aLin)}")
        lab = a.newlabel("noq")
        a(f"s_cmp_eq_u32 {s(sW)}, 3")
        a(f"s_cbranch_scc1 {lab}")
        for f in range(18):
            a(f"ds_read_b128 {v(XQ + 4 * f, 4)}, {T[0]} offset:{f * 1024}")
        a("s_waitcnt lgkmcnt(0)")
        a.label(lab)

    def sm_core(bk):
        out = []
        for q in range(3):
            S, e0, P = XS[bk] + 8 * q, E[q & 1], XPK[q & 1]
            for j in range(8):
                out.append(f"v_exp_f32 {v(e0 + j)}, {v(S + j)}")
            for j in range(4):
                out.append(f"v_cvt_pk_bf16_f32 {v(P + j)}, {v(e0 + 2 * j)}, {v(e0 + 2 * j + 1)}")
            out.append(f"ds_write_b128 {v(aPx)}, {v(P, 4)} offset:{bk * PBLK + q * 1024}")
            for j in range(4):
                out.append(f"v_add_f32 {v(e0 + j)}, {v(e0 + j)}, {v(e0 + 4 + j)}")
            out.append(f"v_add_f32 {v(e0)}, {v(e0)}, {v(e0 + 1)}")
            out.append(f"v_add_f32 {v(e0 + 2)}, {v(e0 + 2)}, {v(e0 + 3)}")
            out.append(f"v_add_f32 {v(vBS[q])}, {v(e0)}, {v(e0 + 2)}")
        return out

    def softmax(bk):
        out = sm_core(bk)
        out.append(f"v_max3_f32 {T[0]}, {v(vBS[0])}, {v(vBS[1])}, {v(vBS[2])}")
        out.append(f"v_mov_b32 {T[1]}, 1.0")
        out.append(f"v_cmp_nle_f32 vcc, {T[0]}, {v(vTH)}")
        out.append(f"s_cbranch_vccnz R_sm{bk}\nK_sm{bk}:")
        out.append(f"ds_write_b32 {v(aAx)}, {T[1]} offset:{bk * 640}")
        for q in range(3):
            out.append(f"v_add_f32 {v(vL[q])}, {v(vL[q])}, {v(vBS[q])}")
        rb = [f"R_sm{bk}:"]
        for q in range(3):
            S = XS[bk] + 8 * q
            t, t2 = T[2], T[3]
            rb += [f"v_max3_f32 {t}, {v(S)}, {v(S + 1)}, {v(S + 2)}",
                   f"v_max3_f32 {t}, {t}, {v(S + 3)}, {v(S + 4)}",
                   f"v_max3_f32 {t}, {t}, {v(S + 5)}, {v(S + 6)}",
                   f"v_max_f32 {t}, {t}, {v(S + 7)}",
                   f"v_mov_b32 {t2}, {t}",
                   f"v_permlane32_swap_b32 {t}, {t2}",
                   f"v_max_f32 {t}, {t}, {t2}",
                   f"v_mov_b32 {t2}, {t}",
                   f"v_permlane16_swap_b32 {t}, {t2}",
                   f"v_max_f32 {t}, {t}, {t2}",
                   f"v_sub_f32 {t}, {t}, {v(vPD[q])}",
                   f"v_max_f32 {t}, {t}, {v(vFL)}",
                   f"v_add_f32 {t2}, {t}, {v(vPD[q])}"]
            for j in range(8):
                rb.append(f"v_sub_f32 {v(S + j)}, {v(S + j)}, {t2}")
            for j in range(4):
                rb.append(f"v_sub_f32 {v(XNM + 4 * q + j)}, {v(XNM + 4 * q + j)}, {t}")
            rb.append(f"v_mov_b32 {v(vPD[q])}, {t if bk == 0 else 0}")
            rb += [f"v_max_f32 {t}, 0, {t}",
                   f"v_exp_f32 {t}, -{t}",
                   f"v_max_f32 {t}, {t}, {v(vONE)}",
                   f"v_mul_f32 {v(vL[q])}, {t}, {v(vL[q])}",
                   f"v_lshrrev_b32 {t2}, 4, {L}",
                   f"v_min_u32 {t2}, 2, {t2}",
                   f"v_cmp_eq_u32 vcc, {q}, {t2}",
                   f"v_cndmask_b32 {T[1]}, {T[1]}, {t}, vcc"]
        rb += [f"v_mov_b32 {v(vFL)}, 0",
               f"v_mov_b32 {v(vONE)}, 0",
               f"v_mov_b32 {v(vTH)}, {'-1.0' if bk == 0 else hex(f32(THR))}"]
        rb += sm_core(bk)
        rb.append(f"s_branch K_sm{bk}")
        rare_blocks.append(rb)
        return out

    def x_block():
        rd, mf = [], []
        for bk in range(2):
            for sp in range(6):
                for kt in range(2):
                    i = 12 * bk + 2 * sp + kt
                    f = XKF + 4 * (i % 8)
                    rd.append(f"ds_read_b128 {v(f, 4)}, {v(aK[sp & 1])} offset:{bk * UNIT + 16 * kt * 384 + (sp >> 1) * 128}")
                    grp = []
                    for q in range(3):
                        acc = v(XS[bk] + 8 * q + 4 * kt, 4)
                        cin = v(XNM + 4 * q, 4) if sp == 0 else acc
                        grp.append(f"v_mfma_f32_16x16x32_bf16 {acc}, {v(f, 4)}, {v(XQ + 4 * (6 * q + sp), 4)}, {cin}")
                    mf.append(grp)
        AH = 4
        for x in rd[:AH]:
            a(x)
        a(f"s_cmp_eq_u32 {s(sN)}, {s(sXLO)}")
        a("s_cbranch_scc1 R_xinit\nK_xinit:")
        rb = ["R_xinit:"]
        for r in vL + vPD + list(range(XNM, XNM + 12)):
            rb.append(f"v_mov_b32 {v(r)}, 0")
        rb += [f"v_mov_b32 {v(vTH)}, -1.0", f"v_mov_b32 {v(vFL)}, 0xff800000", f"v_mov_b32 {v(vONE)}, 1.0",
               "s_branch K_xinit"]
        rare_blocks.append(rb)
        NA = 14
        for i in range(NA):
            a(mf[i][0])
            if i + AH < 24:
                a(rd[i + AH])
            a(mf[i][1])
            a(mf[i][2])
        main = []
        for i in range(NA, 24):
            main.append(mf[i][0] + ("\n" + rd[i + AH] if i + AH < 24 else ""))
            main += mf[i][1:]
        for x in interleave(main, softmax(0)):
            a(x)
        for x in softmax(1):
            a(x)
        a(f"s_add_u32 {s(sT0)}, {s(sXLO)}, 7")
        a(f"s_cmp_eq_u32 {s(sN)}, {s(sT0)}")
        a("s_cbranch_scc1 R_xfin\nK_xfin:")
        rb = ["R_xfin:", f"s_mul_i32 {s(sT0)}, {s(sW)}, 192", f"v_add_u32 {T[2]}, {s(sT0)}, {v(aL)}"]
        for q in range(3):
            l = v(vL[q])
            rb += [f"v_mov_b32 {T[3]}, {l}",
                   f"v_permlane32_swap_b32 {l}, {T[3]}",
                   f"v_add_f32 {l}, {l}, {T[3]}",
                   f"v_mov_b32 {T[3]}, {l}",
                   f"v_permlane16_swap_b32 {l}, {T[3]}",
                   f"v_add_f32 {l}, {l}, {T[3]}",
                   f"v_rcp_f32 {l}, {l}",
                   f"ds_write_b32 {T[2]}, {l} offset:{64 * q}"]
        rb.append("s_branch K_xfin")
        rare_blocks.append(rb)

    def y_block(nd):
        PF, VF = YPF[nd], YVF[nd]
        AL = [48, 52]
        for bk in range(2):
            a(f"ds_read_b128 {v(AL[bk], 4)}, {v(aAy)} offset:{bk * 640}")
        vrd = [[f"ds_read_b64_tr_b16 {v(VF + 4 * (nd * bk + i) + 2 * jj, 2)}, {v(aV[i])} offset:{bk * UNIT + 16 * jj * 384}"
                for i in range(nd) for jj in range(2)] for bk in range(2)]
        prd = [f"ds_read_b128 {v(PF + 4 * (j % 8), 4)}, {v(aPy)} offset:{(j // 9) * PBLK + (j % 9) * 1024}" for j in range(18)]
        AH = 5
        for x in vrd[0] + prd[:AH]:
            a(x)
        for j in range(18):
            bk, q = j // 9, j % 9
            if q == 0:
                A = AL[bk]
                a(f"v_min3_f32 {T[0]}, {v(A)}, {v(A + 1)}, {v(A + 2)}")
                a(f"v_min_f32 {T[0]}, {T[0]}, {v(A + 3)}")
                a(f"v_cmp_gt_f32 vcc, 1.0, {T[0]}")
                a(f"s_cbranch_vccnz R_rs{nd}{bk}\nK_rs{nd}{bk}:")
                rb = [f"R_rs{nd}{bk}:", "s_nop 7"]
                for qq in range(9):
                    rb.append(f"ds_read_b32 {T[qq % 4]}, {v(aAq)} offset:{bk * 640 + 64 * qq}")
                    rb.append("s_waitcnt lgkmcnt(0)")
                    for i in range(nd):
                        for e in range(4):
                            r = YACC + 4 * (9 * i + qq) + e
                            rb.append(f"v_mul_f32 {v(r)}, {T[qq % 4]}, {v(r)}")
                rb += ["s_nop 1", f"s_branch K_rs{nd}{bk}"]
                rare_blocks.append(rb)
            for i in range(nd):
                acc = v(YACC + 4 * (9 * i + q), 4)
                a(f"v_mfma_f32_16x16x32_bf16 {acc}, {v(VF + 4 * (nd * bk + i), 4)}, {v(PF + 4 * (j % 8), 4)}, {acc}")
                if i == 0 and j + AH < 18:
                    a(prd[j + AH])
                if i == 1 and j < len(vrd[1]):
                    a(vrd[1][j])
        a(f"s_and_b32 {s(sT0)}, {s(sN)}, 7")
        a(f"s_cmp_eq_u32 {s(sT0)}, 0")
        a(f"s_cbranch_scc1 R_yfin{nd}\nK_yfin{nd}:")
        rb = [f"R_yfin{nd}:"]
        for q in range(9):
            rb.append(f"ds_read_b32 {v(PF + q)}, {v(aL)} offset:{64 * q}")
        rb += [f"s_lshr_b32 {s(sT0)}, {s(sN)}, 4",
               f"s_mul_i32 {s(sT0)}, {s(sT0)}, {48 * 36 * 4096}",
               f"s_add_u32 {s(sT2)}, {s(sT0)}, {s(sOB)}"]
        for i in range(nd):
            rb += [f"s_add_u32 {s(sT0)}, {s(sDT0)}, {i}",
                   f"s_lshr_b32 {s(sT1)}, {s(sT0)}, 2",
                   f"s_mul_i32 {s(sT1)}, {s(sT1)}, {36 * 4096}",
                   f"s_and_b32 {s(sT0)}, {s(sT0)}, 3",
                   f"s_lshl_b32 {s(sT0)}, {s(sT0)}, 10",
                   f"s_add_u32 {s(sT0)}, {s(sT0)}, {s(sT1)}",
                   f"v_add_u32 {T[i]}, {s(sT0)}, {v(vOst)}"]
        for q in range(9):
            rb += [f"s_mul_i32 {s(sT0)}, {s(sB)}, 9",
                   f"s_add_u32 {s(sT0)}, {s(sT0)}, {q}",
                   f"s_lshr_b32 {s(sT1)}, {s(sT0)}, 1",
                   f"s_lshl_b32 {s(sT1)}, {s(sT1)}, 12",
                   f"s_and_b32 {s(sT0)}, {s(sT0)}, 1",
                   f"s_lshl_b32 {s(sT0)}, {s(sT0)}, 8",
                   f"s_add_u32 {s(sT0)}, {s(sT0)}, {s(sT1)}",
                   f"s_add_u32 {s(sT0)}, {s(sT0)}, {s(sT2)}"]
            for i in range(nd):
                b0 = YACC + 4 * (9 * i + q)
                d = VF + 2 * ((nd * q + i) % 8)
                for e in range(4):
                    rb.append(f"v_mul_f32 {v(b0 + e)}, {v(PF + q)}, {v(b0 + e)}")
                rb.append(f"v_cvt_pk_bf16_f32 {v(d)}, {v(b0)}, {v(b0 + 1)}")
                rb.append(f"v_cvt_pk_bf16_f32 {v(d + 1)}, {v(b0 + 2)}, {v(b0 + 3)}")
                rb.append(f"buffer_store_dwordx2 {v(d, 2)}, {T[i]}, {s(SWS, 4)}, {s(sT0)} offen{ONT}")
                if nd == 3:
                    for e in range(4):
                        rb.append(f"v_mov_b32 {v(b0 + e)}, 0")
        rb.append(f"s_branch K_yfin{nd}")
        rare_blocks.append(rb)

    def att_phase():
        a(f"""
        s_cmp_ge_u32 {s(sWV)}, 4
        s_cselect_b32 {s(sXLO)}, 8, 0
        s_cselect_b32 {s(sYLO)}, 1, 9
        s_cselect_b32 {s(sYHI)}, 9, 17
        s_cmp_eq_u32 {s(sW)}, 3
        s_cselect_b32 {s(sXLO)}, 64, {s(sXLO)}
        s_cselect_b32 {s(sYLO)}, 1, {s(sYLO)}
        s_cselect_b32 {s(sYHI)}, 17, {s(sYHI)}
        s_mov_b32 {s(sN)}, 0
        s_mov_b32 {s(sKD)}, 0
        s_mov_b32 {s(sVD)}, {hex((-PAIR) & 0xFFFFFFFF)}
        s_mov_b32 {s(sPD)}, {PBUF}
        s_mov_b32 {s(sAD)}, 1280
        """)
        for r in aV:
            a(f"v_add_u32 {v(r)}, {PAIR}, {v(r)}")
        a(f"v_add_u32 {v(aPy)}, {PBUF}, {v(aPy)}")
        a(f"v_add_u32 {v(aAy)}, 1280, {v(aAy)}")
        a(f"v_add_u32 {v(aAq)}, 1280, {v(aAq)}")
        a.label(f"{K}_loop")
        a(f"s_cmp_lt_u32 {s(sWV)}, 4")
        a(f"s_cbranch_scc1 {K}_w6")
        a(f"s_cmp_eq_u32 {s(sN)}, 9")
        a(f"s_cbranch_scc1 {K}_w18")
        a("s_waitcnt vmcnt(0)")
        a.label(f"{K}_w6")
        a("s_waitcnt vmcnt(6)")
        a.label(f"{K}_w18")
        a("s_waitcnt vmcnt(18)")
        dstamp(7)
        a("s_barrier")
        dstamp(8)
        a(f"s_cmp_lt_u32 {s(sWV)}, 4")
        a(f"s_cbranch_scc1 {K}_nov")
        for x in kv_pair():
            a(x)
        a.label(f"{K}_nov")
        if cfg.get("nocomp"):
            a(f"s_branch {K}_nox")
        a(f"s_add_u32 {s(sT0)}, {s(sN)}, 1")
        a(f"s_cmp_eq_u32 {s(sT0)}, {s(sYLO)}")
        a("s_cbranch_scc1 R_yzero\nK_yzero:")
        rare_blocks.append(["R_yzero:"] + [f"v_mov_b32 {v(r)}, 0" for r in range(YACC, YACC + 108)] + ["s_branch K_yzero"])
        a(f"s_cmp_lt_u32 {s(sN)}, {s(sYLO)}")
        a(f"s_cbranch_scc1 {K}_noy")
        a(f"s_cmp_ge_u32 {s(sN)}, {s(sYHI)}")
        a(f"s_cbranch_scc1 {K}_noy")
        a(f"s_cmp_eq_u32 {s(sW)}, 3")
        a(f"s_cbranch_scc1 {K}_yh")
        y_block(2)
        a(f"s_branch {K}_noy")
        a.label(f"{K}_yh")
        y_block(3)
        a.label(f"{K}_noy")
        a(f"s_sub_u32 {s(sT0)}, {s(sN)}, {s(sXLO)}")
        a(f"s_cmp_ge_u32 {s(sT0)}, 8")
        a(f"s_cbranch_scc1 {K}_nox")
        a("s_nop 7")
        x_block()
        a.label(f"{K}_nox")
        dstamp(9)
        a(f"s_cmp_ge_u32 {s(sWV)}, 4")
        a(f"s_cbranch_scc1 {K}_nok")
        for x in kv_pair():
            a(x)
        if cfg.get("wopf", 1):
            a(f"s_sub_u32 {s(sT0)}, {s(sN)}, 14")
            a(f"s_cmp_lt_u32 {s(sT0)}, 2")
            a("s_cbranch_scc1 R_wopf\nK_wopf:")
            rb = ["R_wopf:",
                  f"s_mov_b32 {s(SDBG)}, {s(sP + 8)}",
                  f"s_and_b32 {s(SDBG + 1)}, {s(sP + 9)}, 0xffff",
                  f"s_mov_b32 {s(SDBG + 2)}, {6144 * 640 * 2}",
                  f"s_mov_b32 {s(SDBG + 3)}, 0x20000",
                  f"s_sub_u32 {s(sT0)}, 15, {s(sN)}",
                  f"s_lshl_b32 {s(sT0)}, {s(sT0)}, 2",
                  f"s_and_b32 {s(sT1)}, s2, 3",
                  f"s_add_u32 {s(sT0)}, {s(sT0)}, {s(sT1)}",
                  f"s_mul_i32 {s(sT0)}, {s(sT0)}, {768 * 1280}",
                  f"s_lshr_b32 {s(sT1)}, s2, 3",
                  f"s_lshl_b32 {s(sT1)}, {s(sT1)}, 2",
                  f"s_add_u32 {s(sT1)}, {s(sT1)}, {s(sW)}",
                  f"s_mul_i32 {s(sT1)}, {s(sT1)}, {60 * 128}",
                  f"s_add_u32 {s(sT0)}, {s(sT0)}, {s(sT1)}",
                  f"v_min_u32 {T[0]}, 59, {L}",
                  f"v_lshlrev_b32 {T[0]}, 7, {T[0]}",
                  f"buffer_load_dword {T[6]}, {T[0]}, {s(SDBG, 4)}, {s(sT0)} offen",
                  "s_branch K_wopf"]
            rare_blocks.append(rb)
        a.label(f"{K}_nok")
        a(f"s_add_u32 {s(sKD)}, {s(sKD)}, 1")
        a(f"s_cmp_eq_u32 {s(sKD)}, 3")
        a(f"s_cselect_b32 {s(sKD)}, 0, {s(sKD)}")
        a(f"s_cselect_b32 {s(sT1)}, -2, 1")
        a(f"s_mul_i32 {s(sT1)}, {s(sT1)}, {PAIR}")
        for r in aK:
            a(f"v_add_u32 {v(r)}, {s(sT1)}, {v(r)}")
        for r in aV:
            a(f"v_add_u32 {v(r)}, {s(sVD)}, {v(r)}")
        a(f"v_add_u32 {v(aPx)}, {s(sPD)}, {v(aPx)}")
        a(f"v_subrev_u32 {v(aPy)}, {s(sPD)}, {v(aPy)}")
        a(f"v_add_u32 {v(aAx)}, {s(sAD)}, {v(aAx)}")
        a(f"v_subrev_u32 {v(aAy)}, {s(sAD)}, {v(aAy)}")
        a(f"v_subrev_u32 {v(aAq)}, {s(sAD)}, {v(aAq)}")
        for r in (sVD, sPD, sAD):
            a(f"s_sub_u32 {s(r)}, 0, {s(r)}")
        a(f"s_add_u32 {s(sN)}, {s(sN)}, 1")
        a(f"s_cmp_lt_u32 {s(sN)}, 17")
        a("s_waitcnt lgkmcnt(0)")
        a(f"s_cbranch_scc1 {K}_loop")

    stamp(0)
    stamp(62, True)
    a(f"s_cmp_ge_u32 {s(sWV)}, 4")
    a(f"s_cbranch_scc1 {K}_t0y")
    if TOUCH:
        for x in touch("X", 2):
            a(x)
    a(f"s_branch {K}_t0")
    a.label(f"{K}_t0y")
    if TOUCH:
        for x in touch("Y", 2):
            a(x)
    a.label(f"{K}_t0")
    for k in range(2):
        for x in stage_dma(k):
            a(x)
    if cfg.get("codepf", 1):
        a(f"s_cmp_lg_u32 {s(sWV)}, 7")
        a(f"s_cbranch_scc1 {K}_nocpf")
        a(f"s_getpc_b64 {s(SDBG, 2)}")
        a.label(f"{K}_pc")
        a(f"s_sub_u32 {s(SDBG)}, {s(SDBG)}, {K}_pc-att_kernel")
        a(f"s_subb_u32 {s(SDBG + 1)}, {s(SDBG + 1)}, 0")
        a(f"s_and_b32 {s(SDBG + 1)}, {s(SDBG + 1)}, 0xffff")
        a(f"s_mov_b32 {s(SDBG + 2)}, {K}_end-att_kernel")
        a(f"s_mov_b32 {s(SDBG + 3)}, 0x20000")
        a(f"v_lshlrev_b32 {T[0]}, 7, {L}")
        for i in range(4):
            a(f"s_mov_b32 {s(sT0)}, {8192 * i}")
            a(f"buffer_load_dword {v(vDUM)}, {T[0]}, {s(SDBG, 4)}, {s(sT0)} offen")
        a.label(f"{K}_nocpf")
    addr_setup()
    for r in range(QACC, QACC + 108):
        a(f"v_mov_b32 {v(r)}, 0")
    a(f"s_cmp_ge_u32 {s(sWV)}, 4")
    a(f"s_cbranch_scc1 {K}_qY")
    qp_phase("X")
    a(f"s_branch {K}_qdone")
    a.label(f"{K}_qY")
    qp_phase("Y")
    a.label(f"{K}_qdone")
    qp_finish()
    att_phase()
    if cfg.get("stamp"):
        a("s_waitcnt vmcnt(0)")
        stamp(60)
        stamp(63, True)
        srd(a, SDBG, sP + 24, sP + 25, 0x10000000)
        a(f"s_lshl_b32 {s(sT0)}, s2, 3")
        a(f"s_add_u32 {s(sT0)}, {s(sT0)}, {s(sWV)}")
        a(f"s_lshl_b32 {s(sT0)}, {s(sT0)}, 8")
        a(f"s_add_u32 {s(sT0)}, {s(sT0)}, 0x4000000")
        a(f"v_lshlrev_b32 v7, 2, v0")
        a(f"buffer_store_dword v8, v7, {s(SDBG, 4)}, {s(sT0)} offen")
    a("s_endpgm")
    for rb in rare_blocks:
        for x in rb:
            a(x)
    a.label(f"{K}_end")
    a("s_endpgm")
```

```python
import numpy as np

from asmlib import v, s
from lanecalc import LC
from common import *

NST = 4
SSZ = 40960
OB = 16384
CH_O = 36 * 4096
CH_W = 64 * 1280


def gen_k2(a, cfg):
    SWO, SO, SPT = 8, 12, 16
    sBLK, sS, sMT, sNT, sWV, sT0, sT1, sT2 = 20, 21, 22, 23, 24, 25, 26, 27
    sWOFF, sWOFF2, sOOFF, sMW, sMO, sIT, sPO = 28, 29, 30, 31, 32, 33, 34
    sKC, sCW, sCO, sTO, sTW, sZ, sQH, sNH = 35, 36, 37, 38, 39, 40, 41, 42
    sP = 64
    WNT = " nt" if cfg.get("wont", 0) else ""
    ONT = " nt" if cfg.get("olnt", 0) else ""
    PNT = " nt" if cfg.get("pnt", 0) else ""
    PB16 = cfg.get("pb16", 1)
    FIRST = cfg.get("k2first", 1)
    L = "v0"
    T = [f"v{i}" for i in range(1, 8)]
    pWo, pO = 8, 9
    aA = {(lo, n, jj): 10 + 4 * lo + 2 * n + jj for lo in range(2) for n in range(2) for jj in range(2)}
    aB = [18, 19]
    aLin = 20
    tO, tW, tD = 21, 22, 23
    ACC = 24
    FA = [120, 160]
    K = "k2"
    a.label("oproj_kernel")
    a("s_cmp_ge_u32 s2, 240")
    a(f"s_cbranch_scc1 {K}_end")
    a(f"s_load_dwordx2 {s(sP, 2)}, s[0:1], 32")
    a(f"s_load_dwordx2 {s(sP + 2, 2)}, s[0:1], 72")
    a(f"s_load_dwordx2 {s(sP + 4, 2)}, s[0:1], 96")
    c = LC(a)
    c.shr(T[0], 6, "v0")
    a(f"v_readfirstlane_b32 {s(sWV)}, {T[0]}")
    c.and_("v0", 63, "v0")
    c.set_s(s(sWV), np.arange(8))
    a(f"""
    s_bfe_u32 {s(sBLK)}, s2, 0x10002
    s_and_b32 {s(sS)}, s2, 3
    s_lshr_b32 {s(sT0)}, s2, 3
    s_mul_i32 {s(sNT)}, {s(sT0)}, 43
    s_lshr_b32 {s(sNT)}, {s(sNT)}, 8
    s_mul_i32 {s(sT1)}, {s(sNT)}, 6
    s_sub_u32 {s(sMT)}, {s(sT0)}, {s(sT1)}
    s_lshl_b32 {s(sMW)}, {s(sWV)}, 11
    s_mul_i32 {s(sMO)}, {s(sWV)}, 3072
    s_add_u32 {s(sMO)}, {s(sMO)}, {OB}
    s_lshr_b32 {s(sZ)}, {s(sWV)}, 2
    s_bfe_u32 {s(sQH)}, {s(sWV)}, 0x10001
    s_and_b32 {s(sNH)}, {s(sWV)}, 1
    """)
    c.set_s(s(sZ), np.arange(8) >> 2)
    c.set_s(s(sQH), (np.arange(8) >> 1) & 1)
    c.set_s(s(sNH), np.arange(8) & 1)
    Z_, QH_, NH_ = WV >> 2, (WV >> 1) & 1, WV & 1
    r_, c_, h_, G1_ = (LANE >> 2) & 3, LANE & 3, LANE >> 5, (LANE >> 4) & 1
    c.shr(T[0], 4, L)
    c.shl(T[1], 2, T[0])
    c.and_(T[2], 15, L)
    c.xor(T[1], T[1], T[2])
    c.mul24(T[0], 1280, T[0])
    c.lshl_add(v(pWo), T[1], 4, T[0])
    c.check(v(pWo), (LANE >> 4) * 1280 + (((LANE & 15) ^ ((LANE >> 4) << 2)) << 4))
    c.shl(v(aLin), 4, L)
    c.mov(T[0], s(sWV))
    c.mul24(T[0], 3072, T[0])
    c.add(v(pO), T[0], v(aLin))
    a(f"""
    s_mul_i32 {s(sKC)}, {s(sS)}, 12
    s_add_u32 {s(sKC)}, {s(sKC)}, {48 * FIRST}
    s_mul_i32 {s(sWOFF)}, {s(sKC)}, {CH_W}
    s_mov_b32 {s(sTW)}, {s(sWOFF)}
    s_mul_i32 {s(sT0)}, {s(sWV)}, {8 * 1280}
    s_add_u32 {s(sWOFF)}, {s(sWOFF)}, {s(sT0)}
    s_lshl_b32 {s(sT0)}, {s(sNT)}, 8
    s_add_u32 {s(sWOFF)}, {s(sWOFF)}, {s(sT0)}
    s_add_u32 {s(sWOFF2)}, {s(sWOFF)}, {4 * 1280 - 1024}
    s_mul_i32 {s(sOOFF)}, {s(sBLK)}, 96
    s_add_u32 {s(sOOFF)}, {s(sOOFF)}, {s(sKC)}
    s_mul_i32 {s(sOOFF)}, {s(sOOFF)}, {CH_O}
    s_mov_b32 {s(sTO)}, {s(sOOFF)}
    s_mul_i32 {s(sT1)}, {s(sMT)}, {6 * 4096}
    s_add_u32 {s(sOOFF)}, {s(sOOFF)}, {s(sT1)}
    s_mov_b32 {s(sKC)}, 0
    s_mov_b32 {s(sCW)}, {CH_W}
    s_mov_b32 {s(sCO)}, {CH_O}
    """)
    a("s_waitcnt lgkmcnt(0)")
    a(f"s_cmp_eq_u32 {s(sBLK)}, 0")
    a(f"s_cselect_b64 {s(sP, 2)}, {s(sP, 2)}, {s(sP + 2, 2)}")
    srd(a, SWO, sP, sP + 1, 6144 * 640 * 2)
    srd(a, SO, sP + 4, sP + 5, O_BYTES)
    a(f"s_add_u32 {s(sP + 4)}, {s(sP + 4)}, {PART_OFF}")
    a(f"s_addc_u32 {s(sP + 5)}, {s(sP + 5)}, 0")
    srd(a, SPT, sP + 4, sP + 5, PART_BYTES)

    JUMP = (48 if FIRST == 0 else -48) - 11

    def dma(st):
        base = st * SSZ
        out = [f"s_add_u32 m0, {s(sMW)}, {base}",
               f"s_add_u32 {s(sKC)}, {s(sKC)}, 1",
               f"buffer_load_dwordx4 {v(pWo)}, {s(SWO, 4)}, {s(sWOFF)} offen{WNT} lds",
               f"buffer_load_dwordx4 {v(pWo)}, {s(SWO, 4)}, {s(sWOFF2)} offen offset:1024{WNT} lds",
               f"s_add_u32 m0, {s(sMO)}, {base}",
               f"s_cmp_eq_u32 {s(sKC)}, 12"]
        for i in range(3):
            off = f" offset:{1024 * i}" if i else ""
            out.append(f"buffer_load_dwordx4 {v(pO)}, {s(SO, 4)}, {s(sOOFF)} offen{off}{ONT} lds")
        out += [f"s_cselect_b32 {s(sT0)}, {hex((CH_W * JUMP) & 0xFFFFFFFF)}, {s(sCW)}",
                f"s_cselect_b32 {s(sT1)}, {hex((CH_O * JUMP) & 0xFFFFFFFF)}, {s(sCO)}",
                f"s_add_u32 {s(sWOFF)}, {s(sWOFF)}, {s(sT0)}",
                f"s_add_u32 {s(sWOFF2)}, {s(sWOFF2)}, {s(sT0)}",
                f"s_add_u32 {s(sOOFF)}, {s(sOOFF)}, {s(sT1)}",
                f"s_cmp_ge_u32 {s(sKC)}, 24",
                f"s_cselect_b32 {s(sWOFF)}, 0x7fff0000, {s(sWOFF)}",
                f"s_cselect_b32 {s(sWOFF2)}, 0x7fff0000, {s(sWOFF2)}",
                f"s_cselect_b32 {s(sOOFF)}, 0x7fff0000, {s(sOOFF)}"]
        return out

    def stamp(i, real=False):
        if not cfg.get("stamp2"):
            return
        a(f"{'s_memrealtime' if real else 's_memtime'} s[90:91]")
        a("s_waitcnt lgkmcnt(0)")
        a(f"v_writelane_b32 v201, s90, {i}")

    stamp(0)
    stamp(32, True)
    TO, TW = cfg.get("k2to", 0), cfg.get("k2tw", 0)
    a(f"""
    s_lshr_b32 {s(sT0)}, s2, 3
    s_mul_i32 {s(sT1)}, {s(sT0)}, 39
    v_add_u32 {v(tO)}, {s(sT1)}, v0
    v_min_u32 {v(tO)}, 1151, {v(tO)}
    v_lshlrev_b32 {v(tO)}, 7, {v(tO)}
    v_cmp_gt_u32 vcc, 39, v0
    v_mov_b32 v2, 0x7fffffff
    v_cndmask_b32 {v(tO)}, v2, {v(tO)}, vcc
    s_mul_i32 {s(sT1)}, {s(sT0)}, 22
    v_add_u32 {v(tW)}, {s(sT1)}, v0
    v_min_u32 {v(tW)}, 639, {v(tW)}
    v_lshlrev_b32 {v(tW)}, 7, {v(tW)}
    v_cmp_gt_u32 vcc, 22, v0
    v_cndmask_b32 {v(tW)}, v2, {v(tW)}, vcc
    """)

    def touch(c0, n, o=True, w=True):
        g = c0 if c0 < 12 else c0 - 12 + (JUMP + 11)
        lab = a.newlabel("KS_t")
        x = [f"s_add_u32 {s(sT2)}, {s(sWV)}, {hex(g & 0xFFFFFFFF)}",
             f"s_mul_i32 {s(sT0)}, {s(sT2)}, {CH_O}",
             f"s_mul_i32 {s(sT1)}, {s(sT2)}, {CH_W}",
             f"s_add_u32 {s(sT0)}, {s(sT0)}, {s(sTO)}",
             f"s_add_u32 {s(sT1)}, {s(sT1)}, {s(sTW)}",
             f"s_cmp_ge_u32 {s(sWV)}, {n}",
             f"s_cbranch_scc1 {lab}"]
        if o:
            x.append(f"buffer_load_dword {v(tD)}, {v(tO)}, {s(SO, 4)}, {s(sT0)} offen{ONT}")
        if w:
            x.append(f"buffer_load_dword {v(tD)}, {v(tW)}, {s(SWO, 4)}, {s(sT1)} offen{WNT}")
        x.append(f"{lab}:")
        return ["\n".join(x)]

    TS = {-1: (0, 4), 0: (4, 4), 4: (8, 4), 8: (12, 4), 12: (16, 4), 16: (20, 4)}
    if cfg.get("k2ts") == 2:
        TS = {-1: (0, 6), 0: (6, 6), 4: (12, 6), 12: (18, 6)}
    if cfg.get("k2ts") == 3:
        TS = {0: (12, 4), 4: (16, 4), 8: (20, 4)}
    if cfg.get("k2ts") == 4:
        TS = {0: (12, 6), 8: (18, 6)}
    if cfg.get("k2ts") == 0:
        TS = {}

    def tch(it):
        if it not in TS:
            return []
        c0, n = TS[it]
        first_half = c0 < 12
        o = TO or not first_half
        w = bool(TW)
        if not (o or w):
            return []
        return touch(c0, n, o, w)

    for x in tch(-1):
        a(x)
    for st in range(NST - 1):
        for x in dma(st):
            a(x)
    c.bfe(T[0], L, 2, 2)
    c.shr(T[1], 5, L)
    c.lshl_or(T[1], T[1], 3, T[0])
    c.mov(T[5], s(sZ))
    c.lshl_add(T[1], T[5], 5, T[1])
    c.bfe(T[3], L, 4, 1)
    c.and_(T[4], 1, L)
    c.lshl_or(T[3], T[3], 1, T[4])
    c.bfe(T[4], L, 1, 1)
    c.shl(T[4], 3, T[4])
    c.lshl_add(T[4], T[1], 8, T[4])
    for n in range(2):
        c.mov(T[2], s(sNH))
        c.shl(T[2], 1, T[2])
        if n:
            c.or_(T[2], 1, T[2])
        c.xor(T[2], T[0], T[2])
        c.lshl_or(T[2], T[2], 2, T[3])
        c.lshl_add(v(aA[0, n, 0]), T[2], 4, T[4])
        c.add(v(aA[0, n, 1]), 1024, v(aA[0, n, 0]))
        for jj in range(2):
            c.add(v(aA[1, n, jj]), 2 * SSZ, v(aA[0, n, jj]))
            rw = 32 * Z_ + 8 * h_ + 4 * jj + r_
            ch = 4 * (2 * NH_ + n) + 2 * G1_ + (c_ & 1)
            c.check(v(aA[0, n, jj]), rw * 256 + ((ch ^ ((rw & 3) << 2)) << 4) + (c_ >> 1) * 8)
    c.mov(T[0], s(sQH))
    c.mul24(T[0], 3 * 4096, T[0])
    c.lshl_add(T[0], T[5], 11, T[0])
    c.add(T[0], OB, T[0])
    c.add(v(aB[0]), T[0], v(aLin))
    c.add(v(aB[1]), 2 * SSZ, v(aB[0]))
    c.check(v(aB[0]), OB + QH_ * 12288 + Z_ * 2048 + LANE * 16)
    for r in list(range(ACC, ACC + 96)) + list(range(FA[1], FA[1] + 40)):
        a(f"v_mov_b32 {v(r)}, 0")
    a(f"""
    s_lshl_b32 {s(sT0)}, {s(sS)}, 1
    s_add_u32 {s(sT0)}, {s(sT0)}, {s(sBLK)}
    s_mul_i32 {s(sT0)}, {s(sT0)}, 36
    s_mul_i32 {s(sT1)}, {s(sMT)}, 6
    s_add_u32 {s(sT0)}, {s(sT0)}, {s(sT1)}
    s_mul_i32 {s(sT1)}, {s(sQH)}, 3
    s_add_u32 {s(sT0)}, {s(sT0)}, {s(sT1)}
    s_mul_i32 {s(sT0)}, {s(sT0)}, 20
    s_lshl_b32 {s(sT1)}, {s(sNT)}, 2
    s_add_u32 {s(sT0)}, {s(sT0)}, {s(sT1)}
    s_lshl_b32 {s(sT1)}, {s(sNH)}, 1
    s_add_u32 {s(sT0)}, {s(sT0)}, {s(sT1)}
    s_lshl_b32 {s(sPO)}, {s(sT0)}, {11 if PB16 else 12}
    """)

    def fa(ch, kk, n):
        return FA[ch & 1] + 4 * (2 * kk + n)

    def fb(ch, kk, q):
        return FA[ch & 1] + 16 + 4 * (3 * kk + q)

    def reads(ch):
        st = ch % NST
        lo = st >> 1
        base = (st & 1) * SSZ
        out = []
        for kk in range(2):
            for n in range(2):
                for jj in range(2):
                    out.append(f"ds_read_b64_tr_b16 {v(fa(ch, kk, n) + 2 * jj, 2)}, {v(aA[lo, n, jj])} offset:{base + kk * 4096}")
            for q in range(3):
                out.append(f"ds_read_b128 {v(fb(ch, kk, q), 4)}, {v(aB[lo])} offset:{base + q * 4096 + kk * 1024}")
        return out

    def mfmas(ch):
        out = []
        for kk in range(2):
            for q in range(3):
                for n in range(2):
                    acc = v(ACC + 16 * (2 * q + n), 16)
                    out.append(f"v_mfma_f32_32x32x16_bf16 {acc}, {v(fa(ch, kk, n), 4)}, {v(fb(ch, kk, q), 4)}, {acc}")
        return out

    SKIP = cfg.get("k2skip", 1)

    def iteration(ch, role, extra=(), do_mf=True, do_rd=True):
        j = ch % 4
        a(f"s_waitcnt vmcnt({5 if (SKIP and j == 2) else 10})")
        a("s_barrier")
        if SKIP and j == 1:
            d = []
        elif SKIP and j == 2:
            d = dma(0) + dma(1)
        else:
            d = dma((ch + NST - 1) % NST)
        d = d + list(extra)
        rd = reads(ch) if do_rd else []
        mf = mfmas(ch - 1) if do_mf else []
        if role == "Y":
            for x in d:
                a(x)
        pos = 0
        for i, m in enumerate(mf):
            a(m)
            upto = min(len(rd), (len(rd) * (i + 1) + 8) // 9)
            for x in rd[pos:upto]:
                a(x)
            pos = upto
        for x in rd[pos:]:
            a(x)
        if role == "X":
            for x in d:
                a(x)
        a("s_waitcnt lgkmcnt(0)")

    a(f"s_cmp_ge_u32 {s(sWV)}, 4")
    a(f"s_cbranch_scc1 {K}_Y")
    for role in "XY":
        if role == "Y":
            a.label(f"{K}_Y")
        a(f"s_mov_b32 {s(sIT)}, 0")
        a.label(f"{K}_loop{role}")
        for j in range(4):
            extra = []
            if j == 0:
                for it in sorted(k for k in TS if k >= 0):
                    lab = a.newlabel("KS_x")
                    t_ = tch(it)
                    if t_:
                        extra.append("\n".join([f"s_cmp_lg_u32 {s(sIT)}, {it // 4}", f"s_cbranch_scc1 {lab}"] + t_ + [f"{lab}:"]))
            iteration(j, role, extra)
        if cfg.get("stamp2"):
            a("s_memtime s[90:91]")
            a(f"s_add_u32 m0, {s(sIT)}, 1")
            a("s_waitcnt lgkmcnt(0)")
            a("v_writelane_b32 v201, s90, m0")
        a(f"s_add_u32 {s(sIT)}, {s(sIT)}, 1")
        a(f"s_cmp_lt_u32 {s(sIT)}, 6")
        a(f"s_cbranch_scc1 {K}_loop{role}")
        for m in mfmas(23):
            a(m)
        stamp(25)
        a("s_waitcnt vmcnt(0)")
        a("s_barrier")
        a(f"s_and_b32 {s(sT0)}, {s(sWV)}, 3")
        a(f"s_mul_i32 {s(sT0)}, {s(sT0)}, 24576")
        a(f"v_add_u32 {T[0]}, {s(sT0)}, {v(aLin)}")
        give = range(12, 24) if role == "X" else range(0, 12)
        keep = range(0, 12) if role == "X" else range(12, 24)
        for qd in give:
            a(f"ds_write_b128 {T[0]}, {v(ACC + 4 * qd, 4)} offset:{1024 * qd}")
        a("s_waitcnt lgkmcnt(0)")
        a("s_barrier")
        for i, qd in enumerate(keep):
            a(f"ds_read_b128 {v(120 + 4 * i, 4)}, {T[0]} offset:{1024 * qd}")
        for i, qd in enumerate(keep):
            for e in range(4):
                a(f"v_add_f32 {v(ACC + 4 * qd + e)}, {v(ACC + 4 * qd + e)}, {v(120 + 4 * i + e)}")
            tile, r4 = qd >> 2, qd & 3
            q, n = tile >> 1, tile & 1
            if PB16:
                d0 = 168 + 2 * qd % 24
                a(f"v_cvt_pk_bf16_f32 {v(d0)}, {v(ACC + 4 * qd)}, {v(ACC + 4 * qd + 1)}")
                a(f"v_cvt_pk_bf16_f32 {v(d0 + 1)}, {v(ACC + 4 * qd + 2)}, {v(ACC + 4 * qd + 3)}")
                if r4 == 0:
                    a(f"s_add_u32 {s(sT0)}, {s(sPO)}, {(q * 20 + n) * 2048}")
                if r4 & 1:
                    a(f"buffer_store_dwordx4 {v(d0 - 2, 4)}, {v(aLin)}, {s(SPT, 4)}, {s(sT0)} offen offset:{1024 * (r4 >> 1)}{PNT}")
                continue
            if r4 == 0:
                a(f"s_add_u32 {s(sT0)}, {s(sPO)}, {(q * 20 + n) * 4096}")
            a(f"buffer_store_dwordx4 {v(ACC + 4 * qd, 4)}, {v(aLin)}, {s(SPT, 4)}, {s(sT0)} offen offset:{1024 * r4}{PNT}")
        if cfg.get("stamp2"):
            a("s_waitcnt vmcnt(0)")
            stamp(26)
            stamp(33, True)
            srd(a, 52, sP + 4, sP + 5, 0x8000000)
            a(f"s_lshl_b32 {s(sT0)}, s2, 3")
            a(f"s_add_u32 {s(sT0)}, {s(sT0)}, {s(sWV)}")
            a(f"s_lshl_b32 {s(sT0)}, {s(sT0)}, 8")
            a(f"s_add_u32 {s(sT0)}, {s(sT0)}, {0x4000000 - PART_OFF}")
            a(f"v_lshlrev_b32 v200, 2, v0")
            a(f"buffer_store_dword v201, v200, s[52:55], {s(sT0)} offen")
        a("s_endpgm")
    a.label(f"{K}_end")
    a("s_endpgm")
```

```python
import numpy as np

from asmlib import v, s, interleave
from lanecalc import LC, mask_of, emit_mask
from common import *

UNIT = 12288
PAIR = 24576
KR = 0
VR = 3 * PAIR
PR = 5 * PAIR
STG = 2 * PAIR
SW = PAIR
XST = PR
SX_ = 9216
PBLK = 9216
PBUF = 2 * PBLK
SMALL = PR + 2 * PBUF
ALPHA = SMALL
LINV = SMALL + 2560
TICKET_ = SMALL + 3200
QIMG = STG
LDS_K1 = 163840
OOB = 0x7fff0000
THR = 256.0


def gen_fused(a, cfg):
    KVNT = " nt"
    WNT = " nt" if cfg.get("wnt", 1) else ""
    WTNT = " nt" if cfg.get("wtnt", 1) else ""
    XNT = " nt" if cfg.get("xnt", 0) else ""
    ONT = " sc1"
    TOUCH = cfg.get("touch", 1)
    SX, SWQ, SKV, SWS = 8, 12, 16, 24
    sBLK, sB, sH, sHH, sWV, sW, sKV, sC = 28, 29, 30, 31, 32, 33, 34, 35
    sWOFF, sX0, sXE, sTCH, sT0, sT1, sT2, sTP = 36, 37, 38, 39, 40, 41, 42, 43
    sM3, sMW, sMX, sOB, sRING, sRLIM = 44, 45, 46, 47, 48, 49
    sN, sG, sMI, sKD, sVD, sPD, sAD, sSL, sBIG, sKC, sPI = 50, 51, 52, 53, 54, 55, 56, 57, 58, 59, 62
    sXLO, sYLO, sYHI, sDT0 = 63, 92, 93, 20
    sRET = 60
    SDBG = 96
    sP = 64
    L = "v0"
    T = [f"v{i}" for i in range(1, 9)]
    pKV, pW, pX = [9, 10, 11, 232, 233, 234], [12, 13, 14], 15
    aWe = {(i, jj): 16 + 2 * i + jj for i in range(3) for jj in range(2)}
    aXe, aLin = 22, 23
    aK, aV, aPy2 = [24, 25], [26, 27], 28
    aPx, aPy, aAx, aAy, aAq, aL, vOst = 29, 30, 31, 32, 33, 34, 35
    vL, vBS, vPD = [36, 37, 38], [39, 40, 41], [42, 43, 44]
    vTH, vFL, vONE = 45, 46, 47
    E = [48, 148]
    vTCH, vDUM = 36, 37
    QACC, QB, QBA, QA = 56, 164, 200, [208, 220]
    XQ = 184
    XS, XKF, XNM, XPK = [56, 80], 104, 128, [140, 144]
    PKO = [156 + 4 * i for i in range(7)] + [12, 16]
    YACC = 56
    YPF = {2: 128, 3: 168}
    YVF = {2: 160, 3: 200}
    sROT = 21
    sWT = 22
    sOK = 23
    TICKET = TICKET_

    K = "k1"
    KNAME = cfg["kname"]
    a.label(KNAME)
    a("s_cmp_ge_u32 s2, 256")
    a(f"s_cbranch_scc1 {K}_end")
    a(f"s_load_dwordx16 {s(sP, 16)}, s[0:1], 0")
    a(f"s_load_dwordx8 {s(sP + 16, 8)}, s[0:1], 64")
    a(f"s_load_dwordx2 {s(sP + 24, 2)}, s[0:1], 96")
    c = LC(a)
    c.shr(T[0], 6, "v0")
    a(f"v_readfirstlane_b32 {s(sWV)}, {T[0]}")
    c.and_("v0", 63, "v0")
    c.set_s(s(sWV), np.arange(8))
    a(f"s_and_b32 {s(sW)}, {s(sWV)}, 3")
    c.set_s(s(sW), np.arange(8) & 3)
    a(f"""
    s_bfe_u32 {s(sBLK)}, s2, 0x10002
    s_bfe_u32 {s(sB)}, s2, 0x30003
    s_and_b32 {s(sT0)}, s2, 3
    s_lshr_b32 {s(sHH)}, s2, 6
    s_lshl_b32 {s(sT0)}, {s(sT0)}, 2
    s_add_u32 {s(sH)}, {s(sT0)}, {s(sHH)}
    s_mov_b32 {s(sC)}, {hex(f32(CSCALE))}
    s_mul_i32 {s(sM3)}, {s(sW)}, 3072
    s_mul_i32 {s(sMW)}, {s(sWV)}, 3072
    s_lshl_b32 {s(sMX)}, {s(sWV)}, 10
    s_lshl_b32 {s(sT0)}, {s(sB)}, 5
    s_add_u32 {s(sT0)}, {s(sT0)}, {s(sH)}
    s_mul_i32 {s(sKV)}, {s(sT0)}, 196608
    s_lshr_b32 {s(sT0)}, {s(sWV)}, 2
    s_lshl_b32 {s(sT0)}, {s(sT0)}, 4
    s_add_u32 {s(sT0)}, {s(sT0)}, {s(sH)}
    s_mul_i32 {s(sWOFF)}, {s(sT0)}, 384
    s_mul_i32 {s(sT1)}, {s(sB)}, 144
    s_lshl_b32 {s(sT2)}, {s(sWV)}, 4
    s_add_u32 {s(sT2)}, {s(sT2)}, {s(sT1)}
    s_mul_i32 {s(sX0)}, {s(sT2)}, 1280
    s_add_u32 {s(sT2)}, {s(sT1)}, 128
    s_mul_i32 {s(sXE)}, {s(sT2)}, 1280
    s_mov_b32 {s(sKC)}, 0
    s_mov_b32 {s(sPI)}, 0
    s_mul_i32 {s(sTP)}, {s(sHH)}, 2
    s_add_u32 {s(sTP)}, {s(sTP)}, {s(sB)}
    s_and_b32 {s(sTP)}, {s(sTP)}, 7
    s_mul_i32 {s(sG)}, {s(sTP)}, {PAIR}
    s_add_u32 {s(sG)}, {s(sG)}, {s(sKV)}
    s_cmp_ge_u32 {s(sWV)}, 4
    s_cselect_b32 {s(sRING)}, 3, 2
    s_cselect_b32 {s(sMI)}, 0, {VR}
    s_mul_i32 {s(sRING)}, {s(sRING)}, {PAIR}
    s_add_u32 {s(sRLIM)}, {s(sMI)}, {s(sRING)}
    s_lshl_b32 {s(sT0)}, {s(sW)}, 13
    s_add_u32 {s(sMI)}, {s(sMI)}, {s(sT0)}
    s_add_u32 {s(sKV)}, {s(sKV)}, {s(sT0)}
    s_add_u32 {s(sG)}, {s(sG)}, {s(sT0)}
    """)
    c.set_s(s(sM3), (np.arange(8) & 3) * 3072)
    fr, fc, fg = "v48", "v49", "v50"
    c.bfe(fr, L, 2, 2)
    c.and_(fc, 3, L)
    c.shr(fg, 4, L)
    r_, c_, g_ = (LANE >> 2) & 3, LANE & 3, LANE >> 4
    q16 = LANE & 15
    row, chk, sub = "v51", "v52", "v53"
    t1, t2, t3 = T[0], T[1], T[2]
    for j in range(3):
        c.add(T[3], 64 * j, L)
        c.shr(T[4], 3, T[3])
        c.mul24(T[4], 11, T[4])
        c.shr(T[4], 5, T[4])
        c.mul24(T[5], 24, T[4])
        c.sub(T[5], T[3], T[5])
        c.mov(T[6], s(sW))
        c.lshl_add(row, T[6], 3, T[4])
        emit_mask(c, t3, row, t1, t2)
        c.xor(T[5], T[5], t3)
        c.mul24(T[6], 12288, row)
        c.lshl_add(T[6], T[5], 4, T[6])
        c.add(v(pW[j]), (-1024 * j) & 0xFFFFFFFF if j else 0, T[6])
        p = 64 * j + LANE
        rw = 8 * W4 + p // 24
        c.check(v(pW[j]), rw * 12288 + (((p % 24) ^ mask_of(rw)) * 16) - 1024 * j)
    c.sub(T[3], 0, fg)
    c.and_(T[3], 3, T[3])
    c.xor(T[3], fc, T[3])
    c.shr(T[4], 2, L)
    c.mul24(T[4], 1280, T[4])
    c.lshl_add(v(pX), T[3], 4, T[4])
    c.check(v(pX), (LANE >> 2) * 1280 + (((LANE & 3) ^ ((-(LANE >> 4)) & 3)) << 4))
    a(f"""
    v_cmp_le_u32 vcc, 24, {L}
    v_cndmask_b32 {T[0]}, 0, 1, vcc
    v_mul_u32_u24 {T[1]}, 24, {T[0]}
    v_sub_u32 {T[1]}, {L}, {T[1]}
    v_mul_u32_u24 {T[2]}, 11, {T[1]}
    v_lshrrev_b32 {T[2]}, 5, {T[2]}
    v_mul_u32_u24 {T[3]}, 3, {T[2]}
    v_sub_u32 {T[3]}, {T[1]}, {T[3]}
    v_mul_u32_u24 {T[2]}, {8 * 12288}, {T[2]}
    v_mul_u32_u24 {T[0]}, 6144, {T[0]}
    v_lshl_add_u32 {T[2]}, {T[3]}, 7, {T[2]}
    v_add_u32 {T[2]}, {T[0]}, {T[2]}
    v_mul_u32_u24 {T[4]}, 1280, {L}
    s_cmp_ge_u32 {s(sWV)}, 4
    s_cselect_b32 {s(sT0)}, 36, 48
    s_cselect_b64 vcc, -1, 0
    v_cndmask_b32 {T[2]}, {T[2]}, {T[4]}, vcc
    v_mov_b32 {T[3]}, 0x7fffffff
    v_cmp_gt_u32 vcc, {s(sT0)}, {L}
    v_cndmask_b32 {v(vTCH)}, {T[3]}, {T[2]}, vcc
    s_lshl_b32 {s(sT0)}, {s(sW)}, 6
    s_add_u32 {s(sT0)}, {s(sT0)}, {s(sB)}
    s_mul_i32 {s(sT0)}, {s(sT0)}, 12288
    s_add_u32 {s(sT0)}, {s(sT0)}, {s(sWOFF)}
    s_mul_i32 {s(sT2)}, {s(sHH)}, 36
    s_add_u32 {s(sT1)}, {s(sT1)}, {s(sT2)}
    s_mul_i32 {s(sT1)}, {s(sT1)}, 1280
    s_lshl_b32 {s(sT2)}, {s(sW)}, 7
    s_add_u32 {s(sT1)}, {s(sT1)}, {s(sT2)}
    s_cmp_ge_u32 {s(sWV)}, 4
    s_cselect_b32 {s(sTCH)}, {s(sT1)}, {s(sT0)}
    """)
    a("s_waitcnt lgkmcnt(0)")
    a(f"s_cmp_eq_u32 {s(sBLK)}, 0")
    for i in range(5):
        a(f"s_cselect_b64 {s(sP + 2 * i, 2)}, {s(sP + 2 * i, 2)}, {s(sP + 10 + 2 * i, 2)}")
    a(f"s_cmp_ge_u32 {s(sWV)}, 4")
    a(f"s_cselect_b64 {s(sP + 2, 2)}, {s(sP + 2, 2)}, {s(sP + 4, 2)}")
    srd(a, SX, sP + 0, sP + 1, 8 * 144 * 640 * 2)
    srd(a, SKV, sP + 2, sP + 3, 8 * 32 * 512 * 192 * 2)
    srd(a, SWQ, sP + 6, sP + 7, 640 * 6144 * 2)
    srd(a, SWS, sP + 24, sP + 25, O_BYTES + 32768 + 4096)
    SCNT, SWO = 76, 80
    srd(a, SCNT, sP + 22, sP + 23, 256)
    srd(a, SWO, sP + 8, sP + 9, 6144 * 640 * 2)
    PKH = [200 + 4 * i for i in range(14)]
    HTILES = [(0, sl) for sl in range(9)] + [(1, sl) for sl in range(5)]

    def signal(off_sreg_or_imm, val):
        return [f"v_mov_b32 {T[2]}, 0",
                f"v_mov_b32 {T[3]}, {val}",
                "s_mov_b64 exec, 1",
                f"buffer_atomic_add {T[3]}, {T[2]}, {s(SWS, 4)}, {off_sreg_or_imm} offen sc1",
                "s_mov_b64 exec, -1"]

    def poll(name, off, shift, target):
        return [f"s_mov_b32 {s(sT2)}, 0x40000",
                f"v_mov_b32 {T[2]}, 0",
                f"{name}:",
                f"buffer_load_dword {T[3]}, {T[2]}, {s(SWS, 4)}, {off} offen sc1",
                "s_waitcnt vmcnt(0)",
                f"v_readfirstlane_b32 {s(sT1)}, {T[3]}",
                f"s_lshr_b32 {s(sT1)}, {s(sT1)}, {shift}",
                f"s_and_b32 {s(sT1)}, {s(sT1)}, 0xff",
                f"s_cmp_ge_u32 {s(sT1)}, {target}",
                f"s_cbranch_scc1 {name}_ok",
                "s_sleep 2",
                f"s_sub_u32 {s(sT2)}, {s(sT2)}, 1",
                f"s_cmp_lg_u32 {s(sT2)}, 0",
                f"s_cbranch_scc1 {name}",
                f"{name}_ok:",
                "buffer_inv sc1",
                "s_waitcnt vmcnt(0)"]

    def poll4(name, srd_, off, target, inv=True):
        return [f"s_mov_b32 {s(sT2)}, 0x40000",
                f"v_mov_b32 {T[0]}, 0",
                f"{name}:",
                f"buffer_load_dwordx4 v[4:7], {T[0]}, {s(srd_, 4)}, {off} offen sc1",
                "s_waitcnt vmcnt(0)",
                "v_min3_u32 v4, v4, v5, v6",
                "v_min_u32 v4, v4, v7",
                f"v_readfirstlane_b32 {s(sT1)}, v4",
                f"s_cmp_eq_u32 {s(sT1)}, {target}",
                f"s_cbranch_scc1 {name}_ok",
                "s_sleep 1",
                f"s_sub_u32 {s(sT2)}, {s(sT2)}, 1",
                f"s_cmp_lg_u32 {s(sT2)}, 0",
                f"s_cbranch_scc1 {name}",
                f"{name}_ok:"] + (["buffer_inv sc1", "s_waitcnt vmcnt(0)"] if inv else [])

    rare_blocks = []

    def stamp(i, real=False):
        if not cfg.get("stamp"):
            return
        a(f"{'s_memrealtime' if real else 's_memtime'} s[90:91]")
        a("s_waitcnt lgkmcnt(0)")
        a(f"v_writelane_b32 v8, s90, {i}")

    def dstamp(base):
        if not cfg.get("stamp"):
            return
        a("s_memtime s[90:91]")
        a("s_memrealtime s[94:95]")
        a(f"s_mul_i32 {s(sT0)}, {s(sN)}, 3")
        a(f"s_add_u32 m0, {s(sT0)}, {base}")
        a("s_waitcnt lgkmcnt(0)")
        a(f"s_cmp_eq_u32 {s(sWV)}, 7")
        a("s_cselect_b32 s90, s94, s90")
        a("v_writelane_b32 v8, s90, m0")

    def touch(role, n):
        lab = a.newlabel("KS_t")
        stride = 64 * 12288 if role == "X" else 128
        sr, nt = (SWQ, WTNT) if role == "X" else (SX, XNT)
        return ["\n".join([f"s_cmp_ge_u32 {s(sW)}, {n}",
                           f"s_cbranch_scc1 {lab}",
                           f"buffer_load_dword {v(vDUM)}, {v(vTCH)}, {s(sr, 4)}, {s(sTCH)} offen{nt}",
                           f"{lab}:",
                           f"s_add_u32 {s(sTCH)}, {s(sTCH)}, {n * stride}"])]

    def kv_pair():
        out = []
        for hf in range(2):
            out.append(f"s_add_u32 m0, {s(sMI)}, {hf * 4096}")
            out.append(f"s_add_u32 {s(sT0)}, {s(sG)}, {hf * 4096}")
            for j in range(4):
                off = f" offset:{1024 * j}" if j else ""
                out.append(f"buffer_load_dwordx4 {v(pKV[(4 * hf + j) % 6])}, {s(SKV, 4)}, {s(sT0)} offen{off}{KVNT} lds")
        out += [f"s_add_u32 {s(sPI)}, {s(sPI)}, 1",
                f"s_add_u32 {s(sTP)}, {s(sTP)}, 1",
                f"s_and_b32 {s(sTP)}, {s(sTP)}, 7",
                f"s_mul_i32 {s(sG)}, {s(sTP)}, {PAIR}",
                f"s_add_u32 {s(sG)}, {s(sG)}, {s(sKV)}",
                f"s_cmp_ge_u32 {s(sPI)}, 8",
                f"s_cselect_b32 {s(sT0)}, {16 * 196608}, 0",
                f"s_add_u32 {s(sG)}, {s(sG)}, {s(sT0)}",
                f"s_cmp_ge_u32 {s(sPI)}, 16",
                f"s_cselect_b32 {s(sG)}, {hex(OOB)}, {s(sG)}",
                f"s_add_u32 {s(sMI)}, {s(sMI)}, {PAIR}",
                f"s_cmp_ge_u32 {s(sMI)}, {s(sRLIM)}",
                f"s_cselect_b32 {s(sT0)}, {s(sRING)}, 0",
                f"s_sub_u32 {s(sMI)}, {s(sMI)}, {s(sT0)}"]
        return out

    def stage_dma(k):
        st = STG + (k % 3) * SW
        sx = XST + (k % 3) * SX_
        lab = a.newlabel("KS_skip")
        out = ["\n".join([f"s_cmp_lg_u32 {s(sWV)}, {s(sKC)}",
                          f"s_mov_b32 m0, {sx + 8192}",
                          f"s_cbranch_scc1 {lab}",
                          f"buffer_load_dwordx4 {v(pX)}, {s(SX, 4)}, {s(sXE)} offen{XNT} lds",
                          f"{lab}:"]),
               f"s_add_u32 m0, {s(sMW)}, {st}",
               f"s_add_u32 {s(sXE)}, {s(sXE)}, 64"]
        for j in range(3):
            off = f" offset:{1024 * j}" if j else ""
            out.append(f"buffer_load_dwordx4 {v(pW[j])}, {s(SWQ, 4)}, {s(sWOFF)} offen{off}{WNT} lds")
        out += [f"s_add_u32 m0, {s(sMX)}, {sx}",
                f"s_add_u32 {s(sWOFF)}, {s(sWOFF)}, {32 * 12288}",
                f"buffer_load_dwordx4 {v(pX)}, {s(SX, 4)}, {s(sX0)} offen{XNT} lds",
                f"s_add_u32 {s(sX0)}, {s(sX0)}, 64",
                f"s_add_u32 {s(sKC)}, {s(sKC)}, 1",
                f"s_and_b32 {s(sKC)}, {s(sKC)}, 7"]
        return out

    def addr_setup():
        cc = c
        for j in range(6):
            cc.mov(T[3], s(sW))
            cc.shl(T[3], 4, T[3])
            cc.shr(T[4], 3, L)
            cc.add(T[3], T[3], T[4])
            cc.add(T[3], 8 * j, T[3])
            cc.mul24(T[3], 43, T[3])
            cc.shr(row, 7, T[3])
            emit_mask(cc, t3, row, t1, t2)
            cc.xor(T[3], L, t3)
            cc.shl(v(pKV[j]), 4, T[3])
            pp = 64 * (8 * W4 + j) + LANE
            cc.check(v(pKV[j]), 16 * (LANE ^ mask_of(pp // 24)), [0, 1, 2, 4, 5, 6])
        cc.and_(sub, 1, fc)
        cc.mov(T[6], s(sWV))
        cc.shr(T[6], 2, T[6])
        cc.mul24(T[6], 12288, T[6])
        for i in range(3):
            cc.mov(T[4], s(sW))
            cc.mul24(T[4], 6, T[4])
            cc.shr(T[5], 1, fc)
            cc.add(T[4], T[4], T[5])
            cc.add(chk, 2 * i, T[4])
            for jj in range(2):
                cc.lshl_or(row, fg, 3, fr)
                if jj:
                    cc.add(row, 4, row)
                tr_addr(cc, T[3], row, chk, sub, STG, t1, t2, t3)
                cc.add(v(aWe[i, jj]), T[6], T[3])
                dt = 3 * W4 + i
                cc.check(v(aWe[i, jj]), tr_ref(8 * g_ + 4 * jj + r_, 2 * dt + (c_ >> 1), c_ & 1, STG) + (WV >> 2) * 12288)
        cc.sub(T[4], 0, fr)
        cc.and_(T[4], 3, T[4])
        cc.xor(T[6], T[4], fg)
        cc.and_(T[5], 15, L)
        cc.shl(T[5], 6, T[5])
        cc.lshl_add(T[6], T[6], 4, T[5])
        cc.add(v(aXe), XST, T[6])
        cc.check(v(aXe), XST + q16 * 64 + ((g_ ^ ((-(q16 >> 2)) & 3)) << 4))
        cc.shl(v(aLin), 4, L)
        cc.and_(row, 15, L)
        for p in range(2):
            cc.or_(chk, 4 * p, fg)
            tr_addr(cc, v(aK[p]), row, chk, None, KR, t1, t2, t3)
            cc.check(v(aK[p]), tr_ref(q16, 4 * p + g_, 0, KR))
        a(f"""
        s_lshr_b32 {s(sT0)}, {s(sWV)}, 2
        s_lshl_b32 {s(sT0)}, {s(sT0)}, 1
        s_add_u32 {s(sT0)}, {s(sT0)}, 3
        s_cmp_eq_u32 {s(sW)}, 3
        s_cselect_b32 {s(sDT0)}, {s(sT0)}, {s(sW)}
        """)
        T0 = np.where((np.arange(8) & 3) == 3, 3 + 2 * (np.arange(8) >> 2), np.arange(8) & 3)
        cc.set_s(s(sDT0), T0)
        cc.lshl_or(row, fg, 2, fr)
        cc.mov(T[4], s(sDT0))
        cc.lshl_or(chk, T[4], 2, fc)
        tr_addr(cc, v(aV[0]), row, chk, None, VR, t1, t2, t3)
        cc.check(v(aV[0]), tr_ref(4 * g_ + r_, 4 * T0.reshape(8, 1) + c_, 0, VR))
        cc.or_(chk, 16, fc)
        tr_addr(cc, v(aV[1]), row, chk, None, VR, t1, t2, t3)
        cc.check(v(aV[1]), tr_ref(4 * g_ + r_, 16 + c_, 0, VR))
        cc.add(v(aPy), PR, v(aLin))
        cc.add(v(aPx), s(sM3), v(aPy))
        a(f"""
        s_cmp_eq_u32 {s(sWV)}, 7
        s_cselect_b32 {s(sROT)}, 4, 0
        s_cselect_b32 {s(sT1)}, {PBLK}, 0
        s_lshl_b32 {s(sT0)}, {s(sROT)}, 10
        v_add_u32 {v(aPy)}, {s(sT0)}, {v(aPy)}
        v_subrev_u32 {v(aPy2)}, {s(sT1)}, {v(aPy)}
        """)
        a(f"v_subrev_u32 {T[4]}, 16, {L}")
        a(f"v_cmp_gt_u32 vcc, 48, {L}")
        a(f"v_cndmask_b32 {T[4]}, {T[4]}, {L}, vcc")
        a(f"s_mul_i32 {s(sT0)}, {s(sW)}, 192")
        a(f"s_add_u32 {s(sT0)}, {s(sT0)}, {ALPHA}")
        a(f"v_lshl_add_u32 {v(aAx)}, {T[4]}, 2, {s(sT0)}")
        a(f"v_min_u32 {T[4]}, 35, {L}")
        a(f"v_lshlrev_b32 {T[4]}, 4, {T[4]}")
        a(f"v_add_u32 {v(aAy)}, {ALPHA}, {T[4]}")
        a(f"v_and_b32 {T[4]}, 15, {L}")
        a(f"v_lshlrev_b32 {T[5]}, 2, {T[4]}")
        a(f"v_add_u32 {v(aAq)}, {ALPHA}, {T[5]}")
        a(f"v_add_u32 {v(aL)}, {LINV}, {T[5]}")
        a(f"v_lshlrev_b32 {T[4]}, 4, {T[4]}")
        a(f"v_lshrrev_b32 {T[5]}, 4, {L}")
        a(f"v_lshl_add_u32 {v(vOst)}, {T[5]}, 9, {T[4]}")
        a(f"""
        s_mul_i32 {s(sT0)}, {s(sBLK)}, 96
        s_mul_i32 {s(sT1)}, {s(sH)}, 3
        s_add_u32 {s(sT0)}, {s(sT0)}, {s(sT1)}
        s_mul_i32 {s(sOB)}, {s(sT0)}, {36 * 4096}
        """)

    def qp_phase(role):
        def regB(k, q):
            return QBA + 4 * (q - 7) if (q >= 7 and k & 1) else QB + 4 * q

        def rdA(k, i):
            return [f"ds_read_b64_tr_b16 {v(QA[k & 1] + 4 * i + 2 * jj, 2)}, {v(aWe[i, jj])} offset:{(k % 3) * SW}"
                    for jj in range(2)]

        def rdB(k, q):
            return f"ds_read_b128 {v(regB(k, q), 4)}, {v(aXe)} offset:{(k % 3) * SX_ + q * 1024}"

        def mf(k, q, i):
            acc = v(QACC + 4 * (9 * i + q), 4)
            return f"v_mfma_f32_16x16x32_bf16 {acc}, {v(QA[k & 1] + 4 * i, 4)}, {v(regB(k, q), 4)}, {acc}"

        def slot():
            l1, l2 = a.newlabel("KS_s"), a.newlabel("KS_s")
            o = [f"s_mov_b32 {s(sBIG)}, 0",
                 f"s_cmp_ge_u32 {s(sSL)}, 2",
                 f"s_cbranch_scc1 {l1}"]
            if TOUCH:
                o += touch(role, 3)
            o.append(f"{l1}:")
            if role == "Y":
                o += [f"s_and_b32 {s(sT0)}, {s(sSL)}, 6",
                      f"s_cmp_lg_u32 {s(sT0)}, 2",
                      f"s_cbranch_scc1 {l2}",
                      f"s_cmp_eq_u32 {s(sW)}, 3",
                      f"s_cbranch_scc1 {l2}"] + kv_pair() + [f"s_mov_b32 {s(sBIG)}, 1", f"{l2}:"]
            o.append(f"s_add_u32 {s(sSL)}, {s(sSL)}, 1")
            return ["\n".join(o)]

        def iteration(k, in_loop):
            if k <= 19:
                if in_loop and role == "Y" and k % 3 != 0:
                    lab = a.newlabel("KS_w")
                    a(f"s_cmp_eq_u32 {s(sBIG)}, 1")
                    a(f"s_cbranch_scc1 {lab}")
                    a("s_waitcnt vmcnt(4)")
                    a.label(lab)
                    a("s_waitcnt vmcnt(12)")
                else:
                    a(f"s_waitcnt vmcnt({1 if k == 19 else 4})")
            else:
                a("s_waitcnt vmcnt(0)")
            a("s_barrier")
            if k in (0, 19):
                stamp(1 + (0, 19).index(k))
            dma = stage_dma(k + 2) if k <= 18 else []
            stage_dma_last = list(dma)
            if k == 0 and TOUCH:
                dma += touch(role, 3)
            if in_loop and k % 3 == 0:
                dma += slot()
            if in_loop and k == 6:
                l1, l2 = a.newlabel("KS_wo"), a.newlabel("KS_wo")
                wo = [f"s_and_b32 {s(sT0)}, {s(sWV)}, 4",
                      f"s_and_b32 {s(sT1)}, s2, 3",
                      f"s_add_u32 {s(sT0)}, {s(sT0)}, {s(sT1)}",
                      f"s_mul_i32 {s(sT0)}, {s(sT0)}, {768 * 1280}",
                      f"s_lshr_b32 {s(sT1)}, s2, 3",
                      f"s_lshl_b32 {s(sT1)}, {s(sT1)}, 2",
                      f"s_add_u32 {s(sT1)}, {s(sT1)}, {s(sW)}",
                      f"s_mul_i32 {s(sT1)}, {s(sT1)}, {60 * 128}",
                      f"s_add_u32 {s(sT0)}, {s(sT0)}, {s(sT1)}",
                      f"v_min_u32 {T[0]}, 59, {L}",
                      f"v_lshlrev_b32 {T[0]}, 7, {T[0]}"]
                if not cfg.get("woq", 0):
                    wo.append(f"s_mov_b32 {s(sT0)}, {hex(OOB)}")
                wo.append(f"buffer_load_dword {T[6]}, {T[0]}, {s(SWO, 4)}, {s(sT0)} offen")
                nst = len(stage_dma_last)
                dma = ["\n".join([f"s_cmp_eq_u32 {s(sSL)}, 5", f"s_cbranch_scc1 {l1}"] + dma[:nst] +
                                 [f"s_branch {l2}", f"{l1}:"] + wo + [f"{l2}:"])] + dma[nst:]
            early = rdA(k, 0) + rdA(k, 1) + rdA(k, 2) + [rdB(k, 7), rdB(k, 8)]
            if role == "Y":
                for x in dma:
                    a(x)
            for q in range(9):
                for i in range(3):
                    if k:
                        a(mf(k - 1, q, i))
                    if k < 20 and i == 0 and q < 8:
                        a(early[q])
                if k < 20 and q < 7:
                    a(rdB(k, q))
            if role == "X":
                for x in dma:
                    a(x)
            if k < 20:
                a("s_waitcnt lgkmcnt(0)")

        a(f"s_mov_b32 {s(sSL)}, 0")
        a(f"s_mov_b32 {s(sWT)}, {-cfg.get('woq0', 9)}")
        a(f"s_mov_b32 {s(sBIG)}, 0")
        iteration(0, False)
        a.label(f"{K}_qp{role}")
        for k in range(1, 7):
            iteration(k, True)
        a(f"s_cmp_lt_u32 {s(sSL)}, 6")
        a(f"s_cbranch_scc1 {K}_qp{role}")
        iteration(19, False)

    def qp_finish():
        a("s_barrier")
        for j in range(3):
            a(f"v_mov_b32 {v(20 + j)}, {v(232 + j)}")
            pKV[3 + j] = 20 + j
        a(f"v_and_b32 {T[0]}, 15, {L}")
        a(f"v_lshlrev_b32 {T[0]}, 4, {T[0]}")
        a(f"v_lshrrev_b32 {T[1]}, 5, {L}")
        a(f"v_lshl_add_u32 {T[0]}, {T[1]}, 8, {T[0]}")
        a(f"v_bfe_u32 {T[1]}, {L}, 4, 1")
        a(f"v_lshl_add_u32 {T[0]}, {T[1]}, 3, {T[0]}")
        a(f"s_lshr_b32 {s(sT0)}, {s(sWV)}, 2")
        a(f"s_mul_i32 {s(sT0)}, {s(sT0)}, 55296")
        a(f"s_mul_i32 {s(sT1)}, {s(sW)}, 1536")
        a(f"s_add_u32 {s(sT0)}, {s(sT0)}, {s(sT1)}")
        a(f"s_add_u32 {s(sT0)}, {s(sT0)}, {QIMG}")
        a(f"v_add_u32 {T[0]}, {s(sT0)}, {T[0]}")
        k = 19

        def regB(q):
            return QBA + 4 * (q - 7) if q >= 7 else QB + 4 * q

        def post(q):
            o = []
            for i in range(3):
                b0 = QACC + 4 * (9 * i + q)
                for e in range(4):
                    o.append(f"v_mul_f32 {v(b0 + e)}, {s(sC)}, {v(b0 + e)}")
                o.append(f"v_cvt_pk_bf16_f32 {v(b0)}, {v(b0)}, {v(b0 + 1)}")
                o.append(f"v_cvt_pk_bf16_f32 {v(b0 + 1)}, {v(b0 + 2)}, {v(b0 + 3)}")
                o.append(f"ds_write_b64 {T[0]}, {v(b0, 2)} offset:{q * 6144 + i * 512}")
            return o

        for q in range(9):
            for i in range(3):
                acc = v(QACC + 4 * (9 * i + q), 4)
                a(f"v_mfma_f32_16x16x32_bf16 {acc}, {v(QA[1] + 4 * i, 4)}, {v(regB(q), 4)}, {acc}")
        for q in range(9):
            for x in post(q):
                a(x)
        a("s_waitcnt lgkmcnt(0)")
        stamp(6)
        a("s_barrier")
        a(f"s_cmp_lg_u32 {s(sWV)}, 6")
        a(f"s_cbranch_scc1 {K}_nofl")
        a(f"s_cmp_ge_u32 s2, 8")
        a(f"s_cbranch_scc1 {K}_nofl")
        a(f"v_mov_b32 {T[2]}, 0")
        a(f"v_mov_b32 {T[3]}, 1")
        a(f"s_lshl_b32 {s(sT0)}, s2, 2")
        a("s_mov_b64 exec, 1")
        a(f"buffer_store_dword {T[3]}, {T[2]}, {s(SCNT, 4)}, {s(sT0)} offen sc1")
        a("s_mov_b64 exec, -1")
        a.label(f"{K}_nofl")
        a(f"s_lshr_b32 {s(sT0)}, {s(sWV)}, 2")
        a(f"s_mul_i32 {s(sT0)}, {s(sT0)}, 55296")
        a(f"s_min_u32 {s(sT1)}, {s(sW)}, 2")
        a(f"s_mul_i32 {s(sT1)}, {s(sT1)}, {3 * 6144}")
        a(f"s_add_u32 {s(sT0)}, {s(sT0)}, {s(sT1)}")
        a(f"s_add_u32 {s(sT0)}, {s(sT0)}, {QIMG}")
        a(f"v_add_u32 {T[0]}, {s(sT0)}, {v(aLin)}")
        lab = a.newlabel("noq")
        a(f"s_cmp_eq_u32 {s(sW)}, 3")
        a(f"s_cbranch_scc1 {lab}")
        for f in range(18):
            a(f"ds_read_b128 {v(XQ + 4 * f, 4)}, {T[0]} offset:{f * 1024}")
        a("s_waitcnt lgkmcnt(0)")
        a.label(lab)

    def sm_core(bk):
        out = []
        for q in range(3):
            S, e0, P = XS[bk] + 8 * q, E[q & 1], XPK[q & 1]
            for j in range(8):
                out.append(f"v_exp_f32 {v(e0 + j)}, {v(S + j)}")
            for j in range(4):
                out.append(f"v_cvt_pk_bf16_f32 {v(P + j)}, {v(e0 + 2 * j)}, {v(e0 + 2 * j + 1)}")
            out.append(f"ds_write_b128 {v(aPx)}, {v(P, 4)} offset:{bk * PBLK + q * 1024}")
            for j in range(4):
                out.append(f"v_add_f32 {v(e0 + j)}, {v(e0 + j)}, {v(e0 + 4 + j)}")
            out.append(f"v_add_f32 {v(e0)}, {v(e0)}, {v(e0 + 1)}")
            out.append(f"v_add_f32 {v(e0 + 2)}, {v(e0 + 2)}, {v(e0 + 3)}")
            out.append(f"v_add_f32 {v(vBS[q])}, {v(e0)}, {v(e0 + 2)}")
        return out

    def softmax(bk):
        out = sm_core(bk)
        out.append(f"v_max3_f32 {T[0]}, {v(vBS[0])}, {v(vBS[1])}, {v(vBS[2])}")
        out.append(f"v_mov_b32 {T[1]}, 1.0")
        out.append(f"v_cmp_nle_f32 vcc, {T[0]}, {v(vTH)}")
        out.append(f"s_cbranch_vccnz R_sm{bk}\nK_sm{bk}:")
        out.append(f"ds_write_b32 {v(aAx)}, {T[1]} offset:{bk * 640}")
        for q in range(3):
            out.append(f"v_add_f32 {v(vL[q])}, {v(vL[q])}, {v(vBS[q])}")
        rb = [f"R_sm{bk}:"]
        for q in range(3):
            S = XS[bk] + 8 * q
            t, t2 = T[2], T[3]
            rb += [f"v_max3_f32 {t}, {v(S)}, {v(S + 1)}, {v(S + 2)}",
                   f"v_max3_f32 {t}, {t}, {v(S + 3)}, {v(S + 4)}",
                   f"v_max3_f32 {t}, {t}, {v(S + 5)}, {v(S + 6)}",
                   f"v_max_f32 {t}, {t}, {v(S + 7)}",
                   f"v_mov_b32 {t2}, {t}",
                   f"v_permlane32_swap_b32 {t}, {t2}",
                   f"v_max_f32 {t}, {t}, {t2}",
                   f"v_mov_b32 {t2}, {t}",
                   f"v_permlane16_swap_b32 {t}, {t2}",
                   f"v_max_f32 {t}, {t}, {t2}",
                   f"v_sub_f32 {t}, {t}, {v(vPD[q])}",
                   f"v_max_f32 {t}, {t}, {v(vFL)}",
                   f"v_add_f32 {t2}, {t}, {v(vPD[q])}"]
            for j in range(8):
                rb.append(f"v_sub_f32 {v(S + j)}, {v(S + j)}, {t2}")
            for j in range(4):
                rb.append(f"v_sub_f32 {v(XNM + 4 * q + j)}, {v(XNM + 4 * q + j)}, {t}")
            rb.append(f"v_mov_b32 {v(vPD[q])}, {t if bk == 0 else 0}")
            rb += [f"v_max_f32 {t}, 0, {t}",
                   f"v_exp_f32 {t}, -{t}",
                   f"v_max_f32 {t}, {t}, {v(vONE)}",
                   f"v_mul_f32 {v(vL[q])}, {t}, {v(vL[q])}",
                   f"v_lshrrev_b32 {t2}, 4, {L}",
                   f"v_min_u32 {t2}, 2, {t2}",
                   f"v_cmp_eq_u32 vcc, {q}, {t2}",
                   f"v_cndmask_b32 {T[1]}, {T[1]}, {t}, vcc"]
        rb += [f"v_mov_b32 {v(vFL)}, 0",
               f"v_mov_b32 {v(vONE)}, 0",
               f"v_mov_b32 {v(vTH)}, {'-1.0' if bk == 0 else hex(f32(THR))}"]
        rb += sm_core(bk)
        rb.append(f"s_branch K_sm{bk}")
        rare_blocks.append(rb)
        return out

    def x_block():
        rd, mf = [], []
        for bk in range(2):
            for sp in range(6):
                for kt in range(2):
                    i = 12 * bk + 2 * sp + kt
                    f = XKF + 4 * (i % 6)
                    rd.append(f"ds_read_b128 {v(f, 4)}, {v(aK[sp & 1])} offset:{bk * UNIT + 16 * kt * 384 + (sp >> 1) * 128}")
                    grp = []
                    for q in range(3):
                        acc = v(XS[bk] + 8 * q + 4 * kt, 4)
                        cin = v(XNM + 4 * q, 4) if sp == 0 else acc
                        grp.append(f"v_mfma_f32_16x16x32_bf16 {acc}, {v(f, 4)}, {v(XQ + 4 * (6 * q + sp), 4)}, {cin}")
                    mf.append(grp)
        AH = 4
        for x in rd[:AH]:
            a(x)
        a(f"s_cmp_eq_u32 {s(sN)}, {s(sXLO)}")
        a("s_cbranch_scc1 R_xinit\nK_xinit:")
        rb = ["R_xinit:"]
        for r in vL + vPD + list(range(XNM, XNM + 12)):
            rb.append(f"v_mov_b32 {v(r)}, 0")
        rb += [f"v_mov_b32 {v(vTH)}, -1.0", f"v_mov_b32 {v(vFL)}, 0xff800000", f"v_mov_b32 {v(vONE)}, 1.0",
               "s_branch K_xinit"]
        rare_blocks.append(rb)
        NA = 14
        for i in range(NA):
            a(mf[i][0])
            if i + AH < 24:
                a(rd[i + AH])
            a(mf[i][1])
            a(mf[i][2])
        main = []
        for i in range(NA, 24):
            main.append(mf[i][0] + ("\n" + rd[i + AH] if i + AH < 24 else ""))
            main += mf[i][1:]
        for x in interleave(main, softmax(0)):
            a(x)
        for x in softmax(1):
            a(x)
        a(f"s_add_u32 {s(sT0)}, {s(sXLO)}, 7")
        a(f"s_cmp_eq_u32 {s(sN)}, {s(sT0)}")
        a("s_cbranch_scc1 R_xfin\nK_xfin:")
        rb = ["R_xfin:", f"s_mul_i32 {s(sT0)}, {s(sW)}, 192", f"v_add_u32 {T[2]}, {s(sT0)}, {v(aL)}"]
        for q in range(3):
            l = v(vL[q])
            rb += [f"v_mov_b32 {T[3]}, {l}",
                   f"v_permlane32_swap_b32 {l}, {T[3]}",
                   f"v_add_f32 {l}, {l}, {T[3]}",
                   f"v_mov_b32 {T[3]}, {l}",
                   f"v_permlane16_swap_b32 {l}, {T[3]}",
                   f"v_add_f32 {l}, {l}, {T[3]}",
                   f"v_rcp_f32 {l}, {l}",
                   f"ds_write_b32 {T[2]}, {l} offset:{64 * q}"]
        rb.append("s_branch K_xfin")
        rare_blocks.append(rb)

    def qof(sl, dst):
        return [f"s_add_u32 {s(dst)}, {s(sROT)}, {sl}",
                f"s_cmp_ge_u32 {s(dst)}, 9",
                f"s_cselect_b32 {s(sT1)}, 9, 0",
                f"s_sub_u32 {s(dst)}, {s(dst)}, {s(sT1)}"]

    def y_block(nd):
        PF, VF = YPF[nd], YVF[nd]
        npair = 1 if nd == 2 else 2
        AL = [48, 52]

        def acc(p, z, sl):
            return YACC + 4 * (9 * z + sl) if p == 0 else YACC + 72 + 4 * (5 * z + sl)

        def tiles(sl):
            return [(p, z) for p in range(npair) for z in range(2) if p == 0 or sl < 5]

        for bk in range(2):
            a(f"ds_read_b128 {v(AL[bk], 4)}, {v(aAy)} offset:{bk * 640}")
        vf = lambda bk, p, z: VF + 4 * (2 * npair * bk + 2 * p + z)
        vrd = [[f"ds_read_b64_tr_b16 {v(vf(bk, p, z) + 2 * jj, 2)}, {v(aV[p])} offset:{bk * UNIT + 16 * jj * 384 + 8 * z}"
                for p in range(npair) for z in range(2) for jj in range(2)] for bk in range(2)]
        prd = [f"ds_read_b128 {v(PF + 4 * (j % 8), 4)}, {v(aPy if j % 9 < 5 else aPy2)} "
               f"offset:{(j // 9) * PBLK + (j % 9) * 1024}" for j in range(18)]
        AH = 5
        for x in vrd[0] + prd[:AH]:
            a(x)
        for j in range(18):
            bk, sl = j // 9, j % 9
            if sl == 0:
                A = AL[bk]
                a(f"v_min3_f32 {T[0]}, {v(A)}, {v(A + 1)}, {v(A + 2)}")
                a(f"v_min_f32 {T[0]}, {T[0]}, {v(A + 3)}")
                a(f"v_cmp_gt_f32 vcc, 1.0, {T[0]}")
                a(f"s_cbranch_vccnz R_rs{nd}{bk}\nK_rs{nd}{bk}:")
                rb = [f"R_rs{nd}{bk}:", "s_nop 7"]
                for s2 in range(9):
                    rb += qof(s2, sT0)
                    rb += [f"s_lshl_b32 {s(sT0)}, {s(sT0)}, 6",
                           f"v_add_u32 {T[1]}, {s(sT0)}, {v(aAq)}",
                           f"ds_read_b32 {T[2]}, {T[1]} offset:{bk * 640}",
                           "s_waitcnt lgkmcnt(0)"]
                    for p, z in tiles(s2):
                        for e in range(4):
                            r = acc(p, z, s2) + e
                            rb.append(f"v_mul_f32 {v(r)}, {T[2]}, {v(r)}")
                rb += ["s_nop 1", f"s_branch K_rs{nd}{bk}"]
                rare_blocks.append(rb)
            for i, (p, z) in enumerate(tiles(sl)):
                ac = v(acc(p, z, sl), 4)
                a(f"v_mfma_f32_16x16x32_bf16 {ac}, {v(vf(bk, p, z), 4)}, {v(PF + 4 * (j % 8), 4)}, {ac}")
                if i == 0 and j + AH < 18:
                    a(prd[j + AH])
                if i == 1 and j < len(vrd[1]):
                    a(vrd[1][j])
        a(f"s_and_b32 {s(sT0)}, {s(sN)}, 7")
        a(f"s_cmp_eq_u32 {s(sT0)}, 0")
        a(f"s_cbranch_scc1 R_yfin{nd}\nK_yfin{nd}:")
        rb = [f"R_yfin{nd}:"]
        for sl in range(9):
            rb += qof(sl, sT0)
            rb += [f"s_lshl_b32 {s(sT0)}, {s(sT0)}, 6",
                   f"v_add_u32 {T[sl % 4]}, {s(sT0)}, {v(aL)}",
                   f"ds_read_b32 {v(PF + sl)}, {T[sl % 4]}"]
        lst = [(0, sl) for sl in range(9)] if nd == 2 else HTILES
        for n_, (p, sl) in enumerate(lst):
            d = PKO[n_] if nd == 2 else PKH[n_]
            for z in range(2):
                b0 = acc(p, z, sl)
                for e in range(4):
                    rb.append(f"v_mul_f32 {v(b0 + e)}, {v(PF + sl)}, {v(b0 + e)}")
                rb.append(f"v_cvt_pk_bf16_f32 {v(d + 2 * z)}, {v(b0)}, {v(b0 + 1)}")
                rb.append(f"v_cvt_pk_bf16_f32 {v(d + 2 * z + 1)}, {v(b0 + 2)}, {v(b0 + 3)}")
                if nd == 3:
                    for e in range(4):
                        rb.append(f"v_mov_b32 {v(b0 + e)}, 0")
        rb.append(f"s_branch K_yfin{nd}")
        rare_blocks.append(rb)

    def o_addr():
        return [f"s_lshr_b32 {s(sT0)}, {s(sN)}, 4",
                f"s_mul_i32 {s(sT0)}, {s(sT0)}, {48 * 36 * 4096}",
                f"s_add_u32 {s(sT2)}, {s(sT0)}, {s(sOB)}",
                f"s_lshr_b32 {s(sT1)}, {s(sDT0)}, 1",
                f"s_mul_i32 {s(sT1)}, {s(sT1)}, {36 * 4096}",
                f"s_and_b32 {s(sT0)}, {s(sDT0)}, 1",
                f"s_lshl_b32 {s(sT0)}, {s(sT0)}, 11",
                f"s_add_u32 {s(sT0)}, {s(sT0)}, {s(sT1)}",
                f"v_add_u32 {T[0]}, {s(sT0)}, {v(vOst)}",
                f"v_add_u32 {T[1]}, {2 * 36 * 4096}, {v(vOst)}"]

    def o_row(sl):
        return qof(sl, sT0) + [
                f"s_mul_i32 {s(sT1)}, {s(sB)}, 9",
                f"s_add_u32 {s(sT0)}, {s(sT0)}, {s(sT1)}",
                f"s_lshr_b32 {s(sT1)}, {s(sT0)}, 1",
                f"s_lshl_b32 {s(sT1)}, {s(sT1)}, 12",
                f"s_and_b32 {s(sT0)}, {s(sT0)}, 1",
                f"s_lshl_b32 {s(sT0)}, {s(sT0)}, 8",
                f"s_add_u32 {s(sT0)}, {s(sT0)}, {s(sT1)}",
                f"s_add_u32 {s(sT0)}, {s(sT0)}, {s(sT2)}"]

    def att_phase():
        a(f"""
        s_cmp_ge_u32 {s(sWV)}, 4
        s_cselect_b32 {s(sXLO)}, 8, 0
        s_cselect_b32 {s(sYLO)}, 1, 9
        s_cselect_b32 {s(sYHI)}, 9, 17
        s_cmp_eq_u32 {s(sW)}, 3
        s_cselect_b32 {s(sXLO)}, 64, {s(sXLO)}
        s_cselect_b32 {s(sYLO)}, 1, {s(sYLO)}
        s_cselect_b32 {s(sYHI)}, 17, {s(sYHI)}
        s_mov_b32 {s(sN)}, 0
        s_mov_b32 {s(sKD)}, 0
        s_mov_b32 {s(sVD)}, {hex((-PAIR) & 0xFFFFFFFF)}
        s_mov_b32 {s(sPD)}, {PBUF}
        s_mov_b32 {s(sAD)}, 1280
        s_mov_b32 {s(sOK)}, 0
        """)
        for r in aV:
            a(f"v_add_u32 {v(r)}, {PAIR}, {v(r)}")
        a(f"v_add_u32 {v(aPy)}, {PBUF}, {v(aPy)}")
        a(f"v_add_u32 {v(aPy2)}, {PBUF}, {v(aPy2)}")
        a(f"v_add_u32 {v(aAy)}, 1280, {v(aAy)}")
        a(f"v_add_u32 {v(aAq)}, 1280, {v(aAq)}")
        a(f"s_branch {K}_w14")
        a.label(f"{K}_loop")
        a(f"s_cmp_eq_u32 {s(sW)}, 3")
        a(f"s_cbranch_scc1 {K}_w14")
        a(f"s_cmp_eq_u32 {s(sN)}, 16")
        a(f"s_cselect_b32 {s(sT0)}, 0, {s(sWV)}")
        a(f"s_cmp_ge_u32 {s(sT0)}, 4")
        a(f"s_cbranch_scc1 {K}_wk")
        a("s_waitcnt vmcnt(0)")
        a.label(f"{K}_wk")
        a(f"s_sub_u32 {s(sT0)}, {s(sN)}, 9")
        a(f"s_cmp_lt_u32 {s(sT0)}, 4")
        a(f"s_cbranch_scc1 {K}_w11")
        a("s_waitcnt vmcnt(8)")
        a.label(f"{K}_w11")
        a(f"s_sub_u32 {s(sT0)}, {s(sN)}, 10")
        a(f"s_cmp_lt_u32 {s(sT0)}, 2")
        a(f"s_cbranch_scc1 {K}_w14")
        a("s_waitcnt vmcnt(11)")
        a.label(f"{K}_w14")
        a("s_waitcnt vmcnt(14)")
        dstamp(7)
        a("s_barrier")
        dstamp(8)
        a(f"s_cmp_ge_u32 {s(sWV)}, 3")
        a(f"s_cbranch_scc1 {K}_nov")
        a(f"s_cmp_eq_u32 {s(sN)}, 16")
        a(f"s_cbranch_scc1 {K}_nov")
        for x in kv_pair():
            a(x)
        a.label(f"{K}_nov")
        a(f"s_cmp_eq_u32 {s(sN)}, 16")
        a("s_cbranch_scc1 R_opre\nK_opre:")
        a(f"s_add_u32 {s(sT0)}, {s(sN)}, 1")
        a(f"s_cmp_eq_u32 {s(sT0)}, {s(sYLO)}")
        a("s_cbranch_scc1 R_yzero\nK_yzero:")
        rare_blocks.append(["R_yzero:"] + [f"v_mov_b32 {v(r)}, 0" for r in range(YACC, YACC + 112)] + ["s_branch K_yzero"])
        a(f"s_cmp_lt_u32 {s(sN)}, {s(sYLO)}")
        a(f"s_cbranch_scc1 {K}_noy")
        a(f"s_cmp_ge_u32 {s(sN)}, {s(sYHI)}")
        a(f"s_cbranch_scc1 {K}_noy")
        a(f"s_cmp_eq_u32 {s(sW)}, 3")
        a(f"s_cbranch_scc1 {K}_yh")
        y_block(2)
        a(f"s_branch {K}_noy")
        a.label(f"{K}_yh")
        y_block(3)
        a.label(f"{K}_noy")
        a(f"s_sub_u32 {s(sT0)}, {s(sN)}, {s(sXLO)}")
        a(f"s_cmp_ge_u32 {s(sT0)}, 8")
        a(f"s_cbranch_scc1 {K}_nox")
        a("s_setprio 1")
        a("s_nop 6")
        x_block()
        a("s_setprio 0")
        a.label(f"{K}_nox")
        dstamp(9)
        a(f"s_sub_u32 {s(sT0)}, {s(sWV)}, 4")
        a(f"s_cmp_ge_u32 {s(sT0)}, 3")
        a(f"s_cbranch_scc1 {K}_nok")
        a(f"s_cmp_ge_u32 {s(sN)}, 15")
        a(f"s_cbranch_scc1 {K}_nok")
        for x in kv_pair():
            a(x)
        a.label(f"{K}_nok")
        a(f"s_cmp_ge_u32 {s(sN)}, 8")
        a("s_cbranch_scc1 R_ost\nK_ost:")

        def lrows(ls):
            o = []
            for q in ls:
                o += o_row(q)
                o.append(f"buffer_store_dwordx4 {v(PKO[q], 4)}, {T[0]}, {s(SWS, 4)}, {s(sT0)} offen{ONT}")
            return o + ["s_branch K_ost"]

        def hrows():
            o = o_addr()
            for n_, (p, sl) in enumerate(HTILES):
                o += o_row(sl)
                o.append(f"buffer_store_dwordx4 {v(PKH[n_], 4)}, {T[p]}, {s(SWS, 4)}, {s(sT0)} offen{ONT}")
            return o

        WONT = " nt" if cfg.get("wotnt", 0) else ""
        gc0 = [f"s_and_b32 {s(sT0)}, s2, 7", f"s_lshl_b32 {s(sT0)}, {s(sT0)}, 9",
               f"s_add_u32 {s(sT0)}, {s(sT0)}, {O_BYTES + 32768}"]
        rb = ["R_ost:",
              f"s_cmp_eq_u32 {s(sYHI)}, 17", f"s_cselect_b32 {s(sT0)}, 12, 16",
              f"s_cmp_lg_u32 {s(sN)}, {s(sT0)}", "s_cbranch_scc1 ost_a",
              f"s_call_b64 {s(sRET, 2)}, op_addr",
              "ost_a:",
              f"s_cmp_eq_u32 {s(sW)}, 3", "s_cbranch_scc1 svc",
              f"s_cmp_eq_u32 {s(sN)}, 16", "s_cbranch_scc1 ost16",
              f"s_cmp_ge_u32 {s(sN)}, 11", "s_cbranch_scc1 K_ost",
              f"s_cmp_lt_u32 {s(sWV)}, 4", "s_cbranch_scc1 K_ost"] + o_addr() + \
             [f"s_cmp_eq_u32 {s(sN)}, 9", "s_cbranch_scc1 ost9",
              f"s_cmp_eq_u32 {s(sN)}, 10", "s_cbranch_scc1 ost10"] + lrows([0, 1, 2]) + \
             ["ost9:"] + lrows([3, 4, 5]) + ["ost10:"] + lrows([6, 7, 8]) + \
             ["ost16:", "s_waitcnt vmcnt(0)", f"s_cmp_ge_u32 {s(sWV)}, 4", "s_cbranch_scc1 K_ost"] + o_addr() + lrows(range(9))
        slice_ = [f"s_lshr_b32 {s(sT1)}, s2, 3",
                  f"s_lshl_b32 {s(sT1)}, {s(sT1)}, 1",
                  f"s_lshr_b32 {s(sT2)}, {s(sWV)}, 2",
                  f"s_add_u32 {s(sT2)}, {s(sT2)}, {s(sT1)}"]
        rb += ["svc:",
               f"s_and_b32 {s(sT0)}, {s(sN)}, 7", f"s_cmp_eq_u32 {s(sT0)}, 0", "s_cbranch_scc1 svc_st",
               f"s_cmp_eq_u32 {s(sN)}, 11", "s_cbranch_scc1 svc11",
               f"s_cmp_eq_u32 {s(sN)}, 12", "s_cbranch_scc1 svc12",
               f"s_cmp_eq_u32 {s(sN)}, 13", "s_cbranch_scc1 svc13",
               f"s_cmp_eq_u32 {s(sN)}, 14", "s_cbranch_scc1 svc14",
               f"s_cmp_eq_u32 {s(sN)}, 15", "s_cbranch_scc1 svc15",
               "s_branch K_ost",
               "svc11:", f"s_cmp_lg_u32 {s(sWV)}, 3", "s_cbranch_scc1 K_ost",
               f"s_lshl_b32 {s(sT0)}, {s(sBLK)}, 4"] + poll4("pl3", SCNT, s(sT0), 1, inv=False) + ["s_branch K_ost",
               "svc12:", "s_waitcnt vmcnt(0)", "s_branch K_ost",
               "svc13:", f"s_cmp_lg_u32 {s(sWV)}, 3", "s_cbranch_scc1 K_ost"] + gc0 + signal(s(sT0), 1) + \
              ["s_branch K_ost",
               "svc14:", f"s_cmp_lg_u32 {s(sWV)}, 3", "s_cbranch_scc1 svctry",
               f"s_and_b32 {s(sT0)}, s2, 3",
               f"s_mul_i32 {s(sT0)}, {s(sT0)}, {768 * 1280}",
               f"s_lshr_b32 {s(sT2)}, s2, 3",
               f"s_mul_i32 {s(sT1)}, {s(sT2)}, {60 * 128}",
               f"s_add_u32 {s(sT0)}, {s(sT0)}, {s(sT1)}",
               f"v_min_u32 {T[0]}, 59, {L}",
               f"v_lshlrev_b32 {T[0]}, 7, {T[0]}"] + \
              [x for i in range(4) for x in
               (f"buffer_load_dword {T[6]}, {T[0]}, {s(SWO, 4)}, {s(sT0)} offen{WONT}",
                f"s_add_u32 {s(sT0)}, {s(sT0)}, {32 * 60 * 128}")] + \
              ["s_branch K_ost",
               "svc15:", f"s_cmp_eq_u32 {s(sWV)}, 7", "s_cbranch_scc1 svc15b",
               f"s_and_b32 {s(sT0)}, s2, 7", f"s_lshl_b32 {s(sT0)}, {s(sT0)}, 9",
               f"s_add_u32 {s(sT0)}, {s(sT0)}, {O_BYTES + 32768 + 256}",
               f"v_mov_b32 {T[2]}, 0", f"v_mov_b32 {T[3]}, 1", f"v_mov_b32 {T[4]}, {TICKET}",
               "s_mov_b64 exec, 1",
               f"buffer_atomic_add {T[3]}, {T[2]}, {s(SWS, 4)}, {s(sT0)} offen sc0 sc1",
               "s_waitcnt vmcnt(0)",
               f"ds_write_b32 {T[4]}, {T[3]}",
               "s_mov_b64 exec, -1",
               "s_branch K_ost",
               "svc15b:", f"s_cmp_eq_u32 {s(sOK)}, 1", "s_cbranch_scc1 svc15c"] + gc0 + poll("pl0", s(sT0), 0, 32) + \
              ["s_branch otouch",
               "svc15c:", "s_waitcnt vmcnt(0)", "s_branch K_ost",
               "svctry:"] + gc0 + \
              [f"v_mov_b32 {T[2]}, 0",
               f"buffer_load_dword {T[3]}, {T[2]}, {s(SWS, 4)}, {s(sT0)} offen sc1",
               "s_waitcnt vmcnt(0)",
               f"v_readfirstlane_b32 {s(sT1)}, {T[3]}",
               f"s_cmp_ge_u32 {s(sT1)}, 32", "s_cbranch_scc0 K_ost",
               f"s_mov_b32 {s(sOK)}, 1",
               "buffer_inv sc1",
               "otouch:",
               f"s_mul_i32 {s(sT0)}, {s(sBLK)}, 8",
               f"s_and_b32 {s(sT1)}, s2, 3",
               f"s_add_u32 {s(sT0)}, {s(sT0)}, {s(sT1)}",
               f"s_mul_i32 {s(sT0)}, {s(sT0)}, {12 * 36 * 4096}",
               f"s_lshr_b32 {s(sT2)}, s2, 3",
               f"s_mul_i32 {s(sT1)}, {s(sT2)}, {54 * 128}",
               f"s_add_u32 {s(sT0)}, {s(sT0)}, {s(sT1)}",
               f"v_min_u32 {T[0]}, 53, {L}",
               f"v_lshlrev_b32 {T[0]}, 7, {T[0]}"]
        for i in range(8):
            rb += [f"buffer_load_dword {T[6]}, {T[0]}, {s(SWS, 4)}, {s(sT0)} offen",
                   f"s_add_u32 {s(sT0)}, {s(sT0)}, {3 * 18 * 4096}"]
        rb += ["s_branch K_ost", "svc_st:"]
        rb += ["s_waitcnt vmcnt(0)"] + hrows() + ["s_branch K_ost"]
        rare_blocks.append(rb)
        a(f"s_add_u32 {s(sKD)}, {s(sKD)}, 1")
        a(f"s_cmp_eq_u32 {s(sKD)}, 3")
        a(f"s_cselect_b32 {s(sKD)}, 0, {s(sKD)}")
        a(f"s_cselect_b32 {s(sT1)}, -2, 1")
        a(f"s_mul_i32 {s(sT1)}, {s(sT1)}, {PAIR}")
        for r in aK:
            a(f"v_add_u32 {v(r)}, {s(sT1)}, {v(r)}")
        for r in aV:
            a(f"v_add_u32 {v(r)}, {s(sVD)}, {v(r)}")
        a(f"v_add_u32 {v(aPx)}, {s(sPD)}, {v(aPx)}")
        a(f"v_subrev_u32 {v(aPy)}, {s(sPD)}, {v(aPy)}")
        a(f"v_subrev_u32 {v(aPy2)}, {s(sPD)}, {v(aPy2)}")
        a(f"v_add_u32 {v(aAx)}, {s(sAD)}, {v(aAx)}")
        a(f"v_subrev_u32 {v(aAy)}, {s(sAD)}, {v(aAy)}")
        a(f"v_subrev_u32 {v(aAq)}, {s(sAD)}, {v(aAq)}")
        for r in (sVD, sPD, sAD):
            a(f"s_sub_u32 {s(r)}, 0, {s(r)}")
        a(f"s_add_u32 {s(sN)}, {s(sN)}, 1")
        a(f"s_cmp_lt_u32 {s(sN)}, 17")
        a("s_waitcnt lgkmcnt(0)")
        a(f"s_cbranch_scc1 {K}_loop")

    stamp(0)
    stamp(62, True)
    a(f"s_cmp_ge_u32 {s(sWV)}, 4")
    a(f"s_cbranch_scc1 {K}_t0y")
    if TOUCH:
        for x in touch("X", 2):
            a(x)
    a(f"s_branch {K}_t0")
    a.label(f"{K}_t0y")
    if TOUCH:
        for x in touch("Y", 2):
            a(x)
    a.label(f"{K}_t0")
    for k in range(2):
        for x in stage_dma(k):
            a(x)
    if cfg.get("codepf", 1):
        a(f"s_cmp_lg_u32 {s(sWV)}, 7")
        a(f"s_cbranch_scc1 {K}_nocpf")
        a(f"s_getpc_b64 {s(SDBG, 2)}")
        a.label(f"{K}_pc")
        a(f"s_sub_u32 {s(SDBG)}, {s(SDBG)}, {K}_pc-{KNAME}")
        a(f"s_subb_u32 {s(SDBG + 1)}, {s(SDBG + 1)}, 0")
        a(f"s_and_b32 {s(SDBG + 1)}, {s(SDBG + 1)}, 0xffff")
        a(f"s_mov_b32 {s(SDBG + 2)}, {K}_end-{KNAME}")
        a(f"s_mov_b32 {s(SDBG + 3)}, 0x20000")
        a(f"v_lshlrev_b32 {T[0]}, 7, {L}")
        for i in range(4):
            a(f"s_mov_b32 {s(sT0)}, {8192 * i}")
            a(f"buffer_load_dword {v(vDUM)}, {T[0]}, {s(SDBG, 4)}, {s(sT0)} offen")
        a.label(f"{K}_nocpf")
    a(f"s_cmp_lg_u32 {s(sWV)}, 6")
    a(f"s_cbranch_scc1 {K}_noclr")
    a(f"s_cmp_ge_u32 s2, 8")
    a(f"s_cbranch_scc1 {K}_noclr")
    a(f"v_and_b32 {T[0]}, 31, {L}")
    a(f"v_lshlrev_b32 {T[0]}, 10, {T[0]}")
    for r in range(4, 8):
        a(f"v_mov_b32 v{r}, 0")
    a(f"s_lshl_b32 {s(sT0)}, s2, 7")
    a(f"s_add_u32 {s(sT0)}, {s(sT0)}, {O_BYTES}")
    a(f"buffer_store_dwordx4 v[4:7], {T[0]}, {s(SWS, 4)}, {s(sT0)} offen sc1")
    a(f"v_and_b32 {T[0]}, 3, {L}")
    a(f"v_lshlrev_b32 {T[0]}, 7, {T[0]}")
    a(f"s_lshl_b32 {s(sT0)}, s2, 9")
    a(f"s_add_u32 {s(sT0)}, {s(sT0)}, {O_BYTES + 32768}")
    a(f"buffer_store_dword v4, {T[0]}, {s(SWS, 4)}, {s(sT0)} offen sc1")
    a.label(f"{K}_noclr")
    addr_setup()
    for r in range(QACC, QACC + 108):
        a(f"v_mov_b32 {v(r)}, 0")
    a(f"s_cmp_ge_u32 {s(sWV)}, 4")
    a(f"s_cbranch_scc1 {K}_qY")
    qp_phase("X")
    a(f"s_branch {K}_qdone")
    a.label(f"{K}_qY")
    qp_phase("Y")
    a.label(f"{K}_qdone")
    qp_finish()
    att_phase()
    stamp(59)
    import kf_op
    kf_op.gen_op(a, cfg, locals(), "main")
    if cfg.get("stamp"):
        a("s_waitcnt vmcnt(0)")
        stamp(60)
        stamp(63, True)
        srd(a, SDBG, sP + 24, sP + 25, 0x10000000)
        a(f"s_lshl_b32 {s(sT0)}, s2, 3")
        a(f"s_add_u32 {s(sT0)}, {s(sT0)}, {s(sWV)}")
        a(f"s_lshl_b32 {s(sT0)}, {s(sT0)}, 8")
        a(f"s_add_u32 {s(sT0)}, {s(sT0)}, 0x4000000")
        a(f"v_lshlrev_b32 v7, 2, v0")
        a(f"buffer_store_dword v8, v7, {s(SDBG, 4)}, {s(sT0)} offen")
        a(f"s_add_u32 {s(sT0)}, {s(sT0)}, 0x80000")
        a(f"buffer_store_dword v254, v7, {s(SDBG, 4)}, {s(sT0)} offen")
    a("s_endpgm")
    for rb in rare_blocks:
        for x in rb:
            a(x)
    kf_op.gen_op(a, cfg, locals(), "pre")
    kf_op.gen_op(a, cfg, locals(), "addr")
    a.label(f"{K}_end")
    a("s_endpgm")
```

```python
import numpy as np

from asmlib import v, s
from lanecalc import LC
from common import *

NST = 4
SSZ = 40960
OB = 16384
CH_O = 36 * 4096
CH_W = 64 * 1280


def gen_op(a, cfg, env, part):
    sWV, sBLK, sP, SWO, SCNT, SO = env["sWV"], env["sBLK"], env["sP"], env["SWO"], env["SCNT"], env["SWS"]
    signal, poll, stamp, rare_blocks = env["signal"], env["poll"], env["stamp"], env["rare_blocks"]
    poll4 = env["poll4"]
    sT0, sT1, sT2 = env["sT0"], env["sT1"], env["sT2"]
    SPT, SOUT = 8, 12
    sS, sMT, sNT = 66, 30, 31
    sWOFF, sWOFF2, sOOFF, sMW, sMO, sIT, sPO = 34, 35, 36, 37, 38, 39, 43
    sKC, sCW, sCO, sTO, sZ, sQH, sNH, sCO1, sVID = 44, 45, 46, 67, 48, 49, 68, 51, 52
    WNT = " nt" if cfg.get("wont", 0) else ""
    WTNT = " nt" if cfg.get("wotnt", 0) else ""
    L = "v0"
    T = [f"v{i}" for i in range(1, 8)]
    pWo, pO = 9, 10
    aA = {(lo, n, jj): 36 + 4 * lo + 2 * n + jj for lo in range(2) for n in range(2) for jj in range(2)}
    aB = [44, 45]
    aLin = 23
    tO, tD, tW = 34, 35, 33
    ACC = 56
    FA = [152, 192]
    K = "op"
    c = LC(a)
    c.val["v0"] = np.broadcast_to(LANE, (8, 64)).astype(np.int64).copy()
    c.val[v(aLin)] = c.val["v0"] * 16
    c.set_s(s(sWV), np.arange(8))
    JUMP = 48 - 11

    def dma(st):
        base = st * SSZ
        out = [f"s_add_u32 m0, {s(sMW)}, {base}",
               f"s_add_u32 {s(sKC)}, {s(sKC)}, 1",
               f"buffer_load_dwordx4 {v(pWo)}, {s(SWO, 4)}, {s(sWOFF)} offen{WNT} lds",
               f"buffer_load_dwordx4 {v(pWo)}, {s(SWO, 4)}, {s(sWOFF2)} offen offset:1024{WNT} lds",
               f"s_add_u32 m0, {s(sMO)}, {base}",
               f"s_cmp_eq_u32 {s(sKC)}, 12"]
        for i in range(3):
            off = f" offset:{1024 * i}" if i else ""
            out.append(f"buffer_load_dwordx4 {v(pO)}, {s(SO, 4)}, {s(sOOFF)} offen{off} lds")
        out += [f"s_cselect_b32 {s(sT0)}, {hex(CH_W * JUMP)}, {s(sCW)}",
                f"s_cselect_b32 {s(sT1)}, {hex(CH_O * JUMP)}, {s(sCO)}",
                f"s_add_u32 {s(sWOFF)}, {s(sWOFF)}, {s(sT0)}",
                f"s_add_u32 {s(sWOFF2)}, {s(sWOFF2)}, {s(sT0)}",
                f"s_add_u32 {s(sOOFF)}, {s(sOOFF)}, {s(sT1)}",
                f"s_cmp_ge_u32 {s(sKC)}, 24",
                f"s_cselect_b32 {s(sWOFF)}, 0x7fff0000, {s(sWOFF)}",
                f"s_cselect_b32 {s(sWOFF2)}, 0x7fff0000, {s(sWOFF2)}",
                f"s_cselect_b32 {s(sOOFF)}, 0x7fff0000, {s(sOOFF)}"]
        return out

    c.set_s(s(sZ), np.arange(8) >> 2)
    c.set_s(s(sQH), (np.arange(8) >> 1) & 1)
    c.set_s(s(sNH), np.arange(8) & 1)
    Z_, QH_, NH_ = WV >> 2, (WV >> 1) & 1, WV & 1
    r_, c_, h_, G1_ = (LANE >> 2) & 3, LANE & 3, LANE >> 5, (LANE >> 4) & 1
    if part == "addr":
        a.label("op_addr")
        c.bfe(T[0], L, 2, 2)
        c.shr(T[1], 5, L)
        c.lshl_or(T[1], T[1], 3, T[0])
        c.mov(T[5], s(sWV))
        c.shr(T[5], 2, T[5])
        c.lshl_add(T[1], T[5], 5, T[1])
        c.bfe(T[3], L, 4, 1)
        c.and_(T[4], 1, L)
        c.lshl_or(T[3], T[3], 1, T[4])
        c.bfe(T[4], L, 1, 1)
        c.shl(T[4], 3, T[4])
        c.lshl_add(T[4], T[1], 8, T[4])
        for n in range(2):
            c.mov(T[2], s(sWV))
            c.and_(T[2], 1, T[2])
            c.shl(T[2], 1, T[2])
            if n:
                c.or_(T[2], 1, T[2])
            c.xor(T[2], T[0], T[2])
            c.lshl_or(T[2], T[2], 2, T[3])
            c.lshl_add(v(aA[0, n, 0]), T[2], 4, T[4])
            c.add(v(aA[0, n, 1]), 1024, v(aA[0, n, 0]))
            for jj in range(2):
                c.add(v(aA[1, n, jj]), 2 * SSZ, v(aA[0, n, jj]))
                rw = 32 * Z_ + 8 * h_ + 4 * jj + r_
                ch = 4 * (2 * NH_ + n) + 2 * G1_ + (c_ & 1)
                c.check(v(aA[0, n, jj]), rw * 256 + ((ch ^ ((rw & 3) << 2)) << 4) + (c_ >> 1) * 8)
        c.mov(T[0], s(sWV))
        c.bfe(T[0], T[0], 1, 1)
        c.mul24(T[0], 3 * 4096, T[0])
        c.lshl_add(T[0], T[5], 11, T[0])
        c.add(T[0], OB, T[0])
        c.add(v(aB[0]), T[0], v(aLin))
        c.add(v(aB[1]), 2 * SSZ, v(aB[0]))
        c.check(v(aB[0]), OB + QH_ * 12288 + Z_ * 2048 + LANE * 16)
        a(f"s_setpc_b64 {s(env['sRET'], 2)}")
        return
    if part == "pre":
        a.label("R_opre")
        a(f"v_mov_b32 {T[0]}, {env['TICKET']}")
        a(f"ds_read_b32 {T[1]}, {T[0]}")
        a(f"""
        s_and_b32 {s(sCO1)}, s2, 7
        v_readfirstlane_b32 {s(sVID)}, {T[1]}
        s_lshl_b32 {s(sVID)}, {s(sVID)}, 3
        s_add_u32 {s(sVID)}, {s(sVID)}, {s(sCO1)}
        s_lshl_b32 {s(sCO1)}, {s(sCO1)}, 9
        s_add_u32 {s(sCO1)}, {s(sCO1)}, {O_BYTES + 32768 + 128}
        s_cmp_ge_u32 {s(sVID)}, 240
        s_cbranch_scc1 K_opre
        """)
        a(f"""
        s_and_b32 {s(sS)}, s2, 3
        s_lshr_b32 {s(sT0)}, {s(sVID)}, 3
        s_mul_i32 {s(sNT)}, {s(sT0)}, 43
        s_lshr_b32 {s(sNT)}, {s(sNT)}, 8
        s_mul_i32 {s(sT1)}, {s(sNT)}, 6
        s_sub_u32 {s(sMT)}, {s(sT0)}, {s(sT1)}
        s_lshl_b32 {s(sMW)}, {s(sWV)}, 11
        s_mul_i32 {s(sMO)}, {s(sWV)}, 3072
        s_add_u32 {s(sMO)}, {s(sMO)}, {OB}
        s_lshr_b32 {s(sZ)}, {s(sWV)}, 2
        s_bfe_u32 {s(sQH)}, {s(sWV)}, 0x10001
        s_and_b32 {s(sNH)}, {s(sWV)}, 1
        s_mul_i32 {s(sKC)}, {s(sS)}, 12
        s_mul_i32 {s(sWOFF)}, {s(sKC)}, {CH_W}
        s_mul_i32 {s(sT0)}, {s(sWV)}, {8 * 1280}
        s_add_u32 {s(sWOFF)}, {s(sWOFF)}, {s(sT0)}
        s_lshl_b32 {s(sT0)}, {s(sNT)}, 8
        s_add_u32 {s(sWOFF)}, {s(sWOFF)}, {s(sT0)}
        s_add_u32 {s(sWOFF2)}, {s(sWOFF)}, {4 * 1280 - 1024}
        s_mul_i32 {s(sOOFF)}, {s(sBLK)}, 96
        s_add_u32 {s(sOOFF)}, {s(sOOFF)}, {s(sKC)}
        s_mul_i32 {s(sOOFF)}, {s(sOOFF)}, {CH_O}
        s_add_u32 {s(sTO)}, {s(sOOFF)}, {48 * CH_O}
        s_mul_i32 {s(sT1)}, {s(sMT)}, {6 * 4096}
        s_add_u32 {s(sOOFF)}, {s(sOOFF)}, {s(sT1)}
        s_mov_b32 {s(sKC)}, 0
        s_mov_b32 {s(sCW)}, {CH_W}
        s_mov_b32 {s(sCO)}, {CH_O}
        """)
        c.set_s(s(sZ), np.arange(8) >> 2)
        c.set_s(s(sQH), (np.arange(8) >> 1) & 1)
        c.set_s(s(sNH), np.arange(8) & 1)
        Z_, QH_, NH_ = WV >> 2, (WV >> 1) & 1, WV & 1
        r_, c_, h_, G1_ = (LANE >> 2) & 3, LANE & 3, LANE >> 5, (LANE >> 4) & 1
        c.shr(T[0], 4, L)
        c.shl(T[1], 2, T[0])
        c.and_(T[2], 15, L)
        c.xor(T[1], T[1], T[2])
        c.mul24(T[0], 1280, T[0])
        c.lshl_add(v(pWo), T[1], 4, T[0])
        c.check(v(pWo), (LANE >> 4) * 1280 + (((LANE & 15) ^ ((LANE >> 4) << 2)) << 4))
        c.mov(T[0], s(sWV))
        c.mul24(T[0], 3072, T[0])
        c.add(v(pO), T[0], v(aLin))
        for st in range(2):
            for x in dma(st):
                a(x)
        a("s_branch K_opre")
        return
    a(f"""
    s_cmp_lt_u32 {s(sVID)}, 240
    s_cbranch_scc1 {K}_go
    s_waitcnt vmcnt(0)
    s_barrier
    s_cmp_lg_u32 {s(sWV)}, 0
    s_cbranch_scc1 {K}_end
    """)
    for x in signal(s(sCO1), 1):
        a(x)
    a(f"s_branch {K}_end")
    a.label(f"{K}_go")
    a("s_barrier")
    for x in dma(2):
        a(x)
    srd(a, SOUT, sP + 20, sP + 21, 8 * 144 * 1280 * 2)
    a(f"s_add_u32 {s(sP)}, {s(sP + 24)}, {PART_OFF}")
    a(f"s_addc_u32 {s(sP + 1)}, {s(sP + 25)}, 0")
    srd(a, SPT, sP, sP + 1, PART_BYTES // 2)
    a(f"""
    s_lshr_b32 {s(sT0)}, {s(sVID)}, 3
    s_mul_i32 {s(sT1)}, {s(sT0)}, 39
    v_add_u32 {v(tO)}, {s(sT1)}, v0
    v_min_u32 {v(tO)}, 1151, {v(tO)}
    v_lshlrev_b32 {v(tO)}, 7, {v(tO)}
    v_cmp_gt_u32 vcc, 39, v0
    v_mov_b32 v2, 0x7fffffff
    v_cndmask_b32 {v(tO)}, v2, {v(tO)}, vcc
    s_mul_i32 {s(sT1)}, {s(sT0)}, 22
    v_add_u32 {v(tW)}, {s(sT1)}, v0
    v_min_u32 {v(tW)}, 639, {v(tW)}
    v_lshlrev_b32 {v(tW)}, 7, {v(tW)}
    v_cmp_gt_u32 vcc, 22, v0
    v_cndmask_b32 {v(tW)}, v2, {v(tW)}, vcc
    """)
    lab = a.newlabel("noz")
    a(f"s_and_b32 {s(sT0)}, {s(sWV)}, 3")
    a(f"s_cmp_eq_u32 {s(sT0)}, 3")
    a(f"s_cbranch_scc1 {lab}")
    for r in range(ACC, ACC + 96):
        a(f"v_mov_b32 {v(r)}, 0")
    a.label(lab)
    a(f"""
    s_lshl_b32 {s(sT0)}, {s(sS)}, 1
    s_add_u32 {s(sT0)}, {s(sT0)}, {s(sBLK)}
    s_mul_i32 {s(sT0)}, {s(sT0)}, 36
    s_mul_i32 {s(sT1)}, {s(sMT)}, 6
    s_add_u32 {s(sT0)}, {s(sT0)}, {s(sT1)}
    s_mul_i32 {s(sT1)}, {s(sQH)}, 3
    s_add_u32 {s(sT0)}, {s(sT0)}, {s(sT1)}
    s_mul_i32 {s(sT0)}, {s(sT0)}, 20
    s_lshl_b32 {s(sT1)}, {s(sNT)}, 2
    s_add_u32 {s(sT0)}, {s(sT0)}, {s(sT1)}
    s_lshl_b32 {s(sT1)}, {s(sNH)}, 1
    s_add_u32 {s(sT0)}, {s(sT0)}, {s(sT1)}
    s_lshl_b32 {s(sPO)}, {s(sT0)}, 11
    """)

    def fa(ch, kk, n):
        return FA[ch & 1] + 4 * (2 * kk + n)

    def fb(ch, kk, q):
        return FA[ch & 1] + 16 + 4 * (3 * kk + q)

    def reads(ch):
        st = ch % NST
        lo = st >> 1
        base = (st & 1) * SSZ
        out = []
        for kk in range(2):
            for n in range(2):
                for jj in range(2):
                    out.append(f"ds_read_b64_tr_b16 {v(fa(ch, kk, n) + 2 * jj, 2)}, {v(aA[lo, n, jj])} offset:{base + kk * 4096}")
            for q in range(3):
                out.append(f"ds_read_b128 {v(fb(ch, kk, q), 4)}, {v(aB[lo])} offset:{base + q * 4096 + kk * 1024}")
        return out

    def mfmas(ch):
        out = []
        for kk in range(2):
            for q in range(3):
                for n in range(2):
                    acc = v(ACC + 16 * (2 * q + n), 16)
                    out.append(f"v_mfma_f32_32x32x16_bf16 {acc}, {v(fa(ch, kk, n), 4)}, {v(fb(ch, kk, q), 4)}, {acc}")
        return out

    PIT = cfg.get("pit", 7)

    def iteration(j, role):
        if j < 2:
            lab = a.newlabel("KS_w")
            a(f"s_cmp_eq_u32 {s(sIT)}, 0")
            a(f"s_cbranch_scc1 {lab}")
            a("s_waitcnt vmcnt(10)")
            a.label(lab)
        else:
            a("s_waitcnt vmcnt(10)")
        a("s_barrier")
        if cfg.get("stamp"):
            a("s_memtime s[90:91]")
            a(f"s_lshl_b32 {s(sT0)}, {s(sIT)}, 2")
            a(f"s_add_u32 m0, {s(sT0)}, {j}")
            a("s_waitcnt lgkmcnt(0)")
            a("v_writelane_b32 v254, s90, m0")
        d = dma((j + NST - 1) % NST)
        rd = reads(j)
        mf = mfmas(j - 1)
        if role == "Y":
            for x in d:
                a(x)
        pos = 0
        if j == 0:
            a(f"s_cmp_eq_u32 {s(sIT)}, 0")
            a(f"s_cbranch_scc1 R_f{role}")
            rare_blocks.append([f"R_f{role}:"] + rd + ["s_waitcnt lgkmcnt(0)", f"s_branch K_f{role}"])
        for i, m in enumerate(mf):
            a(m)
            upto = min(len(rd), (len(rd) * (i + 1) + 8) // 9)
            for x in rd[pos:upto]:
                a(x)
            pos = upto
        if j == 0:
            a.label(f"K_f{role}")
        if role == "X":
            for x in d:
                a(x)
        a("s_waitcnt lgkmcnt(0)")
        WIT = cfg.get("wit", 3)
        if j == WIT % 4:
            lab = a.newlabel("KS_t")
            a(f"s_cmp_lg_u32 {s(sIT)}, {WIT // 4}")
            a(f"s_cbranch_scc1 {lab}")
            a(f"s_mul_i32 {s(sT2)}, {s(sS)}, 12")
            a(f"s_add_u32 {s(sT2)}, {s(sT2)}, {s(sWV)}")
            a(f"s_add_u32 {s(sT2)}, {s(sT2)}, 48")
            a(f"s_mul_i32 {s(sT0)}, {s(sT2)}, {CH_W}")
            a(f"buffer_load_dword {v(tD)}, {v(tW)}, {s(SWO, 4)}, {s(sT0)} offen{WTNT}")
            if role == "X":
                a(f"s_add_u32 {s(sT0)}, {s(sT0)}, {8 * CH_W}")
                a(f"buffer_load_dword {v(tD)}, {v(tW)}, {s(SWO, 4)}, {s(sT0)} offen{WTNT}")
            a.label(lab)
        if role == "X" and j == 2:
            a(f"s_cmp_eq_u32 {s(sIT)}, 0")
            a(f"s_cbranch_scc1 R_s{j}\nK_s{j}:")
            rare_blocks.append([f"R_s{j}:", f"s_cmp_lg_u32 {s(sWV)}, 0", f"s_cbranch_scc1 K_s{j}"] +
                               signal(s(sCO1), 1) + [f"s_branch K_s{j}"])
        if role == "X" and j == PIT % 4:
            a(f"s_cmp_eq_u32 {s(sIT)}, {PIT // 4}")
            a("s_cbranch_scc1 R_p1\nK_p1:")
            rare_blocks.append(["R_p1:", f"s_cmp_lg_u32 {s(sWV)}, 0", "s_cbranch_scc1 K_p1"] +
                               poll("pl1", s(sCO1), 0, 32) + ["s_branch K_p1"])
        if j == (PIT + 1) % 4 and cfg.get("o1t", 1):
            lab = a.newlabel("KS_t")
            a(f"s_sub_u32 {s(sT2)}, {s(sIT)}, {(PIT + 1) // 4}")
            a(f"s_cmp_ge_u32 {s(sT2)}, 2")
            a(f"s_cbranch_scc1 {lab}")
            a(f"s_cmp_ge_u32 {s(sWV)}, 6")
            a(f"s_cbranch_scc1 {lab}")
            a(f"s_mul_i32 {s(sT2)}, {s(sT2)}, 6")
            a(f"s_add_u32 {s(sT2)}, {s(sT2)}, {s(sWV)}")
            a(f"s_mul_i32 {s(sT0)}, {s(sT2)}, {CH_O}")
            a(f"s_add_u32 {s(sT0)}, {s(sT0)}, {s(sTO)}")
            a(f"buffer_load_dword {v(tD)}, {v(tO)}, {s(SO, 4)}, {s(sT0)} offen")
            a.label(lab)

    a(f"s_mov_b32 {s(sIT)}, 0")
    a(f"s_cmp_ge_u32 {s(sWV)}, 4")
    a(f"s_cbranch_scc1 {K}_loopY")
    for role in "XY":
        a.label(f"{K}_loop{role}")
        for j in range(4):
            iteration(j, role)
        a(f"s_add_u32 {s(sIT)}, {s(sIT)}, 1")
        a(f"s_cmp_lt_u32 {s(sIT)}, 6")
        a(f"s_cbranch_scc1 {K}_loop{role}")
        for m in mfmas(23):
            a(m)
        stamp(3)
        a("s_waitcnt vmcnt(0)")
        a("s_barrier")
        a(f"s_and_b32 {s(sT0)}, {s(sWV)}, 3")
        a(f"s_mul_i32 {s(sT0)}, {s(sT0)}, 24576")
        a(f"v_add_u32 {T[0]}, {s(sT0)}, {v(aLin)}")
        give = range(12, 24) if role == "X" else range(0, 12)
        keep = range(0, 12) if role == "X" else range(12, 24)
        for qd in give:
            a(f"ds_write_b128 {T[0]}, {v(ACC + 4 * qd, 4)} offset:{1024 * qd}")
        a("s_waitcnt lgkmcnt(0)")
        a("s_barrier")
        for i, qd in enumerate(keep):
            a(f"ds_read_b128 {v(152 + 4 * i, 4)}, {T[0]} offset:{1024 * qd}")
        for i, qd in enumerate(keep):
            for e in range(4):
                a(f"v_add_f32 {v(ACC + 4 * qd + e)}, {v(ACC + 4 * qd + e)}, {v(152 + 4 * i + e)}")
            tile, r4 = qd >> 2, qd & 3
            q, n = tile >> 1, tile & 1
            d0 = 200 + 2 * i
            a(f"v_cvt_pk_bf16_f32 {v(d0)}, {v(ACC + 4 * qd)}, {v(ACC + 4 * qd + 1)}")
            a(f"v_cvt_pk_bf16_f32 {v(d0 + 1)}, {v(ACC + 4 * qd + 2)}, {v(ACC + 4 * qd + 3)}")
            if r4 == 0:
                a(f"s_add_u32 {s(sT0)}, {s(sPO)}, {(q * 20 + n) * 2048}")
            if r4 & 1:
                a(f"buffer_store_dwordx4 {v(d0 - 2, 4)}, {v(aLin)}, {s(SPT, 4)}, {s(sT0)} offen offset:{1024 * (r4 >> 1)} sc1")
        if role == "X":
            a(f"s_branch {K}_red")
    a.label(f"{K}_red")
    a("s_waitcnt vmcnt(0)")
    a("s_barrier")
    stamp(4)
    a(f"""
    s_cmp_lg_u32 {s(sWV)}, 0
    s_cbranch_scc1 {K}_w
    s_andn2_b32 {s(sT0)}, {s(sVID)}, 3
    s_lshl_b32 {s(sT0)}, {s(sT0)}, 7
    s_lshl_b32 {s(sT1)}, {s(sS)}, 2
    s_add_u32 {s(sT0)}, {s(sT0)}, {s(sT1)}
    s_add_u32 {s(sT0)}, {s(sT0)}, {O_BYTES}
    v_lshlrev_b32 v3, 7, v0
    v_mov_b32 v4, 1
    s_mov_b64 exec, 15
    buffer_store_dword v4, v3, {s(SO, 4)}, {s(sT0)} offen sc1
    s_mov_b64 exec, -1
    s_lshl_b32 {s(sT0)}, {s(sVID)}, 7
    s_add_u32 {s(sT0)}, {s(sT0)}, {O_BYTES}
    """)
    for x in poll4("pl2", SO, s(sT0), 1, inv=False):
        a(x)
    a.label(f"{K}_w")
    a(f"""
    s_mul_i32 {s(sT0)}, {s(sS)}, 6
    s_add_u32 {s(sT0)}, {s(sT0)}, {s(sWV)}
    s_lshr_b32 {s(sT1)}, {s(sT0)}, 2
    s_and_b32 {s(sT0)}, {s(sT0)}, 3
    s_mul_i32 {s(sT2)}, {s(sMT)}, 6
    s_add_u32 {s(sT1)}, {s(sT1)}, {s(sT2)}
    s_lshl_b32 {s(sT2)}, {s(sNT)}, 2
    s_add_u32 {s(sT0)}, {s(sT0)}, {s(sT2)}
    s_mul_i32 {s(sT2)}, {s(sBLK)}, 36
    s_add_u32 {s(sT2)}, {s(sT2)}, {s(sT1)}
    s_mul_i32 {s(sT2)}, {s(sT2)}, 20
    s_add_u32 {s(sT2)}, {s(sT2)}, {s(sT0)}
    s_lshl_b32 {s(sPO)}, {s(sT2)}, 11
    s_mul_i32 {s(sT1)}, {s(sT1)}, 81920
    s_mul_i32 {s(sT2)}, {s(sBLK)}, 1280
    s_add_u32 {s(sT1)}, {s(sT1)}, {s(sT2)}
    s_lshl_b32 {s(sT0)}, {s(sT0)}, 6
    s_add_u32 {s(sOOFF)}, {s(sT1)}, {s(sT0)}
    v_and_b32 v3, 31, v0
    v_mul_u32_u24 v3, 2560, v3
    v_lshrrev_b32 v4, 5, v0
    v_lshl_add_u32 v3, v4, 4, v3
    s_barrier
    s_cmp_ge_u32 {s(sWV)}, 6
    s_cbranch_scc1 {K}_end
    """)
    stamp(5)
    for p in range(4):
        for hf in range(2):
            a(f"buffer_load_dwordx4 {v(88 + 8 * p + 4 * hf, 4)}, {v(aLin)}, {s(SPT, 4)}, {s(sPO)} offen offset:{1024 * hf} sc1")
        a(f"s_add_u32 {s(sPO)}, {s(sPO)}, {72 * 20 * 2048}")
    for p in range(4):
        a(f"s_waitcnt vmcnt({6 - 2 * p})")
        for e in range(8):
            src = v(88 + 8 * p + e)
            if p == 0:
                a(f"v_lshlrev_b32 {v(56 + 2 * e)}, 16, {src}")
                a(f"v_and_b32 {v(56 + 2 * e + 1)}, 0xffff0000, {src}")
            else:
                a(f"v_lshlrev_b32 v5, 16, {src}")
                a(f"v_and_b32 v6, 0xffff0000, {src}")
                a(f"v_add_f32 {v(56 + 2 * e)}, {v(56 + 2 * e)}, v5")
                a(f"v_add_f32 {v(56 + 2 * e + 1)}, {v(56 + 2 * e + 1)}, v6")
    for e in range(8):
        a(f"v_cvt_pk_bf16_f32 {v(72 + e)}, {v(56 + 2 * e)}, {v(56 + 2 * e + 1)}")
    a(f"buffer_store_dwordx4 v[72:75], v3, {s(SOUT, 4)}, {s(sOOFF)} offen")
    a(f"buffer_store_dwordx4 v[76:79], v3, {s(SOUT, 4)}, {s(sOOFF)} offen offset:32")
    a.label(f"{K}_end")
```

```python
import math
import struct
import sys

import numpy as np

from asmlib import Asm, v, s, interleave
from lanecalc import LC, mask_of, emit_mask

NAME = "concat_heads__mha_block_cached__mha_block_cached__near_ridge"


def f32(x):
    return struct.unpack("<I", struct.pack("<f", x))[0]


CSCALE = (192 ** -0.5) * math.log2(math.e)
TLAZY = 8.0

O_BYTES = 2 * 36 * 384 * 1024
PART_OFF = 32 * 1024 * 1024
PART_BYTES = 4 * 2 * 36 * 20 * 4096

UNIT = 12288
KR = 0
VR = 5 * UNIT
PR = 10 * UNIT
STG = VR + 3 * UNIT
SS = 21504
XOFF = 12288
PBUF = [PR, PR + 16384]
PE = PR + 32768
SMALL = PE + 4096
ALPHA = SMALL
ALPHAE = SMALL + 2048
ME = SMALL + 2304
LE = SMALL + 2560
QE = STG + 2 * SS
QH3 = QE + 6144
MERGE = STG
LDS_K1 = 163840

LANE = np.arange(64).reshape(1, 64)
WV = np.arange(8).reshape(8, 1)
W4 = WV & 3


def srd(a, d, lo, hi, nbytes):
    a(f"s_mov_b32 {s(d)}, {s(lo)}")
    a(f"s_and_b32 {s(d + 1)}, {s(hi)}, 0xffff")
    a(f"s_mov_b32 {s(d + 2)}, {hex(nbytes)}")
    a(f"s_mov_b32 {s(d + 3)}, 0x20000")


def tr_addr(c, d, row, chunk, sub, base, t1, t2, t3):
    emit_mask(c, t3, row, t1, t2)
    c.xor(t3, chunk, t3)
    c.mul24(t1, 384, row)
    c.lshl_add(t3, t3, 4, t1)
    if sub is not None:
        c.lshl_add(t3, sub, 3, t3)
    c.add(d, base, t3)


def tr_ref(row, chunk, sub, base):
    return base + row * 384 + ((chunk ^ mask_of(row)) << 4) + sub * 8


class VMQ:
    def __init__(self):
        self.q = []

    def issue(self, tag, n=1):
        self.q += [tag] * n

    def wait_for(self, tags):
        last = -1
        for i, t in enumerate(self.q):
            if t in tags:
                last = i
        n = len(self.q) - 1 - last
        self.q = self.q[last + 1:]
        return n


def gen_k1(a, cfg):
    NXT = cfg.get("nxt", 3)
    NSX = cfg.get("nsx", 2)
    KVNT = cfg.get("kvnt", " nt")
    tilesX = list(range(NXT))
    tilesY = list(range(NXT, 6))
    SX, SWQ, SK, SV, SWS = 8, 12, 16, 20, 24
    sBLK, sB, sH, sRND, sWV, sW, sKV, sC = 28, 29, 30, 31, 32, 33, 34, 35
    sWOFF, sX0, sX1, sXE, sT0, sT1, sT2, sONES = 36, 37, 38, 39, 40, 41, 42, 43
    sM3, sM2, sNC, sTC, sOM, sOE, sH0 = 44, 45, 46, 47, 48, 49, 50
    sKC, sCW, sK0 = 56, 57, 58
    WNT = " nt" if cfg.get("wnt", 1) else ""
    ONT = " nt" if cfg.get("ont", 0) else ""
    sP = 64
    vL = 0
    T = [f"v{i}" for i in range(1, 10)]
    pKV = [10, 11, 12]
    pW = [13, 14, 15]
    pX = 9
    aW = {(tp, jj): 16 + 2 * tp + jj for tp in range(2) for jj in range(2)}
    aXB = [20, 21]
    aWe = {(i, jj): 22 + 2 * i + jj for i in range(3) for jj in range(2)}
    aXe = 28
    aLin = 29
    aM = [30, 31, 32, 33]
    aE = [34, 35, 36, 37]
    cE = [38, 39, 40, 41]
    aAl = 42
    aAe = 43
    aPw = 44
    aQE = 45
    vM, vNM, vTH, vAL = 46, 47, 48, 49
    vMe, vNMe, vTHe, vALe = 50, 51, 52, 53
    vt0, vt1 = 54, 55
    QACC = 128
    QSA = 192
    QA = {0: 56, 1: 72}
    QB = {0: 88, 1: 92}
    QAE = 96
    QBE = 108
    XQ, XQE, XS, XSE, XKF, XP, XPE = 56, 104, [128, 144], 160, 168, [200, 208], 216
    YO, YOE, YVF, YP, YPE = 56, 152, 200, 232, 248
    vLs, vLe = 46, 47
    vAa, vAb, vAeY = 48, 49, 50

    K = "k1"
    a.label("att_kernel")
    a(f"s_cmp_ge_u32 s2, 256")
    a(f"s_cbranch_scc1 {K}_end")
    a(f"s_load_dwordx16 {s(sP, 16)}, s[0:1], 0")
    a(f"s_load_dwordx8 {s(sP + 16, 8)}, s[0:1], 64")
    a(f"s_load_dwordx2 {s(sP + 24, 2)}, s[0:1], 96")
    c = LC(a)
    c.shr(T[0], 6, "v0")
    a(f"v_readfirstlane_b32 {s(sWV)}, {T[0]}")
    c.and_("v0", 63, "v0")
    c.set_s(s(sWV), np.arange(8))
    a(f"s_and_b32 {s(sW)}, {s(sWV)}, 3")
    c.set_s(s(sW), np.arange(8) & 3)
    a(f"""
    s_bfe_u32 {s(sBLK)}, s2, 0x10002
    s_bfe_u32 {s(sB)}, s2, 0x30003
    s_and_b32 {s(sT0)}, s2, 3
    s_lshr_b32 {s(sT1)}, s2, 6
    s_lshl_b32 {s(sT0)}, {s(sT0)}, 2
    s_add_u32 {s(sH0)}, {s(sT0)}, {s(sT1)}
    s_mov_b32 {s(sRND)}, 0
    s_mov_b32 {s(sC)}, {hex(f32(CSCALE))}
    s_mov_b32 {s(sNC)}, {hex(f32(-CSCALE))}
    s_mov_b32 {s(sTC)}, {hex(f32(TLAZY / CSCALE))}
    s_mov_b32 {s(sONES)}, 0x3f803f80
    s_mul_i32 {s(sM3)}, {s(sW)}, 3072
    s_lshl_b32 {s(sM2)}, {s(sW)}, 11
    s_mov_b32 {s(sCW)}, {32 * 12288}
    s_mul_i32 {s(sK0)}, {s(sB)}, 5
    s_lshr_b32 {s(sK0)}, {s(sK0)}, 1
    s_mul_i32 {s(sT1)}, {s(sT1)}, 5
    s_add_u32 {s(sK0)}, {s(sK0)}, {s(sT1)}
    s_cmp_ge_u32 {s(sK0)}, 20
    s_cselect_b32 {s(sT1)}, 20, 0
    s_sub_u32 {s(sK0)}, {s(sK0)}, {s(sT1)}
    s_mul_i32 {s(sK0)}, {s(sK0)}, {cfg.get("rot", 1)}
    """)
    c.set_s(s(sM3), (np.arange(8) & 3) * 3072)
    c.set_s(s(sM2), (np.arange(8) & 3) * 2048)
    L = "v0"
    fr, fc, fh, fg, fG1 = "v46", "v47", "v48", "v49", "v50"
    c.bfe(fr, L, 2, 2)
    c.and_(fc, 3, L)
    c.shr(fh, 5, L)
    c.shr(fg, 4, L)
    c.bfe(fG1, L, 4, 1)
    r_, c_, h_, g_, G1_ = (LANE >> 2) & 3, LANE & 3, LANE >> 5, LANE >> 4, (LANE >> 4) & 1
    row, chk, sub = "v51", "v52", "v53"
    t1, t2, t3 = T[0], T[1], T[2]
    for j in range(3):
        c.add(T[3], 64 * j, L)
        c.shr(T[4], 3, T[3])
        c.mul24(T[4], 11, T[4])
        c.shr(T[4], 5, T[4])
        c.mul24(T[5], 24, T[4])
        c.sub(T[5], T[3], T[5])
        c.mov(T[6], s(sW))
        c.lshl_add(row, T[6], 3, T[4])
        emit_mask(c, t3, row, t1, t2)
        c.xor(T[6], L, t3)
        c.lshl_add(v(pKV[j]), T[6], 4, s(sM3))
        c.xor(T[5], T[5], t3)
        c.mul24(T[6], 12288, row)
        c.lshl_add(T[6], T[5], 4, T[6])
        c.add(v(pW[j]), (-1024 * j) & 0xFFFFFFFF if j else 0, T[6])
        p = 64 * j + LANE
        rr = p // 24
        rw = 8 * W4 + rr
        c.check(v(pKV[j]), rw * 384 + (((p % 24) ^ mask_of(rw)) * 16) - 1024 * j)
        c.check(v(pW[j]), rw * 12288 + (((p % 24) ^ mask_of(rw)) * 16) - 1024 * j)
    c.sub(T[3], 0, fg)
    c.and_(T[3], 3, T[3])
    c.xor(T[3], fc, T[3])
    c.shr(T[4], 2, L)
    c.mul24(T[4], 1280, T[4])
    c.lshl_add(T[7], T[3], 4, T[4])
    c.check(T[7], (LANE >> 2) * 1280 + (((LANE & 3) ^ ((-(LANE >> 4)) & 3)) << 4))
    c.and_(T[3], 1, fc)
    c.lshl_or(T[3], fG1, 1, T[3])
    c.shr(sub, 1, fc)
    for tp in range(2):
        for jj in range(2):
            c.lshl_or(row, fh, 3, fr)
            if jj:
                c.add(row, 4, row)
            c.or_(chk, 4 * tp, T[3])
            tr_addr(c, v(aW[tp, jj]), row, chk, sub, STG, t1, t2, t3)
            c.check(v(aW[tp, jj]), tr_ref(8 * h_ + 4 * jj + r_, 4 * tp + 2 * G1_ + (c_ & 1), c_ >> 1, STG))
    c.bfe(T[4], L, 2, 2)
    c.sub(T[4], 0, T[4])
    c.and_(T[4], 3, T[4])
    c.and_(T[5], 31, L)
    c.shl(T[5], 6, T[5])
    c.add(T[5], s(sM2), T[5])
    for s2 in range(2):
        c.or_(T[6], 2 * s2, fh)
        c.xor(T[6], T[4], T[6])
        c.lshl_add(T[6], T[6], 4, T[5])
        c.add(v(aXB[s2]), STG + XOFF, T[6])
        q = LANE & 31
        c.check(v(aXB[s2]), STG + XOFF + (32 * W4 + q) * 64 + (((2 * s2 + h_) ^ ((-(q >> 2)) & 3)) << 4))
    c.xor(T[6], T[4], fg)
    c.and_(T[5], 15, L)
    c.shl(T[5], 6, T[5])
    c.lshl_add(T[6], T[6], 4, T[5])
    c.add(v(aXe), STG + XOFF + 8192, T[6])
    q16 = LANE & 15
    c.check(v(aXe), STG + XOFF + 8192 + q16 * 64 + ((g_ ^ ((-(q16 >> 2)) & 3)) << 4))
    c.shl(v(aLin), 4, L)
    c.and_(T[5], 31, L)
    c.shl(T[5], 2, T[5])
    c.mov(T[6], s(sW))
    c.lshl_add(T[5], T[6], 8, T[5])
    c.add(v(aAl), ALPHA, T[5])
    c.and_(T[5], 15, L)
    c.shl(v(aAe), 2, T[5])
    c.lshl_add(T[5], T[6], 12, v(aLin))
    c.add(v(aPw), PR, T[5])
    c.and_(T[5], 15, L)
    c.mul24(T[5], 384, T[5])
    c.add(v(aQE), QE, T[5])
    c.mov(v(pX), T[7])
    T = T[:8]

    a("s_waitcnt lgkmcnt(0)")
    a(f"s_cmp_eq_u32 {s(sBLK)}, 0")
    for i in range(4):
        a(f"s_cselect_b64 {s(sP + 2 * i, 2)}, {s(sP + 2 * i, 2)}, {s(sP + 10 + 2 * i, 2)}")
    srd(a, SX, sP + 0, sP + 1, 8 * 144 * 640 * 2)
    srd(a, SK, sP + 2, sP + 3, 8 * 32 * 512 * 192 * 2)
    srd(a, SV, sP + 4, sP + 5, 8 * 32 * 512 * 192 * 2)
    srd(a, SWQ, sP + 6, sP + 7, 640 * 6144 * 2)
    srd(a, SWS, sP + 24, sP + 25, O_BYTES)
    a(f"s_cmp_ge_u32 {s(sWV)}, 4")
    a(f"s_cbranch_scc1 {K}_ysetup")

    rare_blocks = []

    def stamp(i, real=False):
        if not cfg.get("stamp"):
            return
        a(f"{'s_memrealtime' if real else 's_memtime'} s[90:91]")
        a("s_waitcnt lgkmcnt(0)")
        a(f"v_writelane_b32 v255, s90, {i}")

    def role_setup(role):
        cc = LC(a)
        cc.val = dict(c.val)
        waves = [0, 1, 2, 3] if role == "X" else [4, 5, 6, 7]
        i0, n = (0, NSX) if role == "X" else (NSX, 3 - NSX)
        cc.and_(sub, 1, fc)
        for i in range(n):
            cc.mov(T[4], s(sW))
            cc.mul24(T[4], 6, T[4])
            cc.shr(T[5], 1, fc)
            cc.add(T[4], T[4], T[5])
            cc.add(chk, 2 * (i0 + i), T[4])
            for jj in range(2):
                cc.lshl_or(row, fg, 3, fr)
                if jj:
                    cc.add(row, 4, row)
                tr_addr(cc, v(aWe[i, jj]), row, chk, sub, STG, t1, t2, t3)
                dt = 3 * W4 + i0 + i
                cc.check(v(aWe[i, jj]), tr_ref(8 * g_ + 4 * jj + r_, 2 * dt + (c_ >> 1), c_ & 1, STG), waves)
        if role == "X":
            cc.and_(row, 31, L)
            for i in range(4):
                cc.or_(chk, 2 * i, fh)
                tr_addr(cc, v(aM[i]), row, chk, None, KR, t1, t2, t3)
                cc.check(v(aM[i]), tr_ref(LANE & 31, 2 * i + h_, 0, KR))
            cc.and_(row, 15, L)
            for p in range(2):
                cc.or_(chk, 4 * p, fg)
                tr_addr(cc, v(aE[p]), row, chk, None, KR, t1, t2, t3)
                cc.check(v(aE[p]), tr_ref(LANE & 15, 4 * p + g_, 0, KR))
        else:
            cc.and_(T[3], 1, fc)
            cc.lshl_or(T[3], fG1, 1, T[3])
            cc.shr(sub, 1, fc)
            for tp in range(2):
                for jj in range(2):
                    cc.lshl_or(row, fh, 2, fr)
                    if jj:
                        cc.add(row, 8, row)
                    cc.or_(chk, 4 * tp, T[3])
                    tr_addr(cc, v(aM[2 * tp + jj]), row, chk, sub, VR, t1, t2, t3)
                    cc.check(v(aM[2 * tp + jj]),
                             tr_ref(8 * jj + 4 * h_ + r_, 4 * tp + 2 * G1_ + (c_ & 1), c_ >> 1, VR))
            cc.and_(sub, 1, fc)
            cc.lshl_or(row, fg, 2, fr)
            for i in range(4):
                cc.shr(chk, 1, fc)
                cc.or_(chk, 2 * i, chk)
                tr_addr(cc, v(aE[i]), row, chk, sub, VR, t1, t2, t3)
                cc.check(v(aE[i]), tr_ref(4 * g_ + r_, 2 * i + (c_ >> 1), c_ & 1, VR))

    def task_setup():
        a(f"""
        s_lshl_b32 {s(sT0)}, {s(sRND)}, 4
        s_add_u32 {s(sH)}, {s(sH0)}, {s(sT0)}
        s_lshl_b32 {s(sT0)}, {s(sB)}, 5
        s_add_u32 {s(sT0)}, {s(sT0)}, {s(sH)}
        s_mul_i32 {s(sKV)}, {s(sT0)}, 196608
        s_mul_i32 {s(sWOFF)}, {s(sH)}, 384
        s_and_b32 {s(sT0)}, {s(sB)}, 1
        s_mul_i32 {s(sT1)}, {s(sB)}, 144
        s_lshl_b32 {s(sT2)}, {s(sT0)}, 4
        s_add_u32 {s(sT2)}, {s(sT2)}, {s(sT1)}
        s_lshl_b32 {s(sX0)}, {s(sW)}, 5
        s_add_u32 {s(sX0)}, {s(sX0)}, {s(sT2)}
        s_mul_i32 {s(sX0)}, {s(sX0)}, 1280
        s_add_u32 {s(sX1)}, {s(sX0)}, {20480 - 1024}
        s_xor_b32 {s(sT2)}, {s(sT0)}, 1
        s_lshl_b32 {s(sT2)}, {s(sT2)}, 7
        s_add_u32 {s(sT2)}, {s(sT2)}, {s(sT1)}
        s_mul_i32 {s(sXE)}, {s(sT2)}, 1280
        s_mov_b32 {s(sKC)}, {s(sK0)}
        s_mul_i32 {s(sT2)}, {s(sK0)}, {32 * 12288}
        s_add_u32 {s(sWOFF)}, {s(sWOFF)}, {s(sT2)}
        s_lshl_b32 {s(sT2)}, {s(sK0)}, 6
        s_add_u32 {s(sX0)}, {s(sX0)}, {s(sT2)}
        s_add_u32 {s(sX1)}, {s(sX1)}, {s(sT2)}
        s_add_u32 {s(sXE)}, {s(sXE)}, {s(sT2)}
        """)
        a(f"""
        s_mul_i32 {s(sT1)}, {s(sB)}, 9
        s_add_u32 {s(sT1)}, {s(sT1)}, {s(sT0)}
        s_lshr_b32 {s(sT1)}, {s(sT1)}, 1
        s_add_u32 {s(sT1)}, {s(sT1)}, {s(sW)}
        s_mul_i32 {s(sT2)}, {s(sBLK)}, 96
        s_mul_i32 {s(sOM)}, {s(sH)}, 3
        s_add_u32 {s(sT2)}, {s(sT2)}, {s(sOM)}
        s_mul_i32 {s(sT2)}, {s(sT2)}, 36
        s_add_u32 {s(sOM)}, {s(sT1)}, {s(sT2)}
        s_lshl_b32 {s(sOM)}, {s(sOM)}, 12
        s_lshr_b32 {s(sOE)}, {s(sB)}, 1
        s_mul_i32 {s(sOE)}, {s(sOE)}, 9
        s_add_u32 {s(sOE)}, {s(sOE)}, 4
        s_add_u32 {s(sOE)}, {s(sOE)}, {s(sT2)}
        s_lshl_b32 {s(sOE)}, {s(sOE)}, 12
        s_lshl_b32 {s(sT0)}, {s(sT0)}, 8
        s_add_u32 {s(sOE)}, {s(sOE)}, {s(sT0)}
        """)

    def kv_dma(kind, half):
        base = (KR if kind == "K" else VR) + (half % 5) * UNIT
        sr = SK if kind == "K" else SV
        out = [f"s_add_u32 m0, {s(sM3)}, {base}",
               f"s_add_u32 {s(sT0)}, {s(sKV)}, {half * UNIT}"]
        for j in range(3):
            off = f" offset:{1024 * j}" if j else ""
            out.append(f"buffer_load_dwordx4 {v(pKV[j])}, {s(sr, 4)}, {s(sT0)} offen{off}{KVNT} lds")
        return out

    def stage_dma(k, vq):
        st = STG + (k % 3) * SS
        lab = a.newlabel("KS_skip")
        out = [f"s_cmp_lg_u32 {s(sW)}, {k % 4}",
               f"s_mov_b32 m0, {st + XOFF + 8192}",
               f"s_cbranch_scc1 {lab}",
               f"buffer_load_dwordx4 {v(pX)}, {s(SX, 4)}, {s(sXE)} offen{WNT} lds",
               f"{lab}:",
               f"s_add_u32 m0, {s(sM3)}, {st}",
               f"s_add_u32 {s(sKC)}, {s(sKC)}, 1"]
        for j in range(3):
            off = f" offset:{1024 * j}" if j else ""
            out.append(f"buffer_load_dwordx4 {v(pW[j])}, {s(SWQ, 4)}, {s(sWOFF)} offen{off}{WNT} lds")
        out += [f"s_add_u32 m0, {s(sM2)}, {st + XOFF}",
                f"s_cmp_eq_u32 {s(sKC)}, 20",
                f"buffer_load_dwordx4 {v(pX)}, {s(SX, 4)}, {s(sX0)} offen{WNT} lds",
                f"buffer_load_dwordx4 {v(pX)}, {s(SX, 4)}, {s(sX1)} offen offset:1024{WNT} lds",
                f"s_cselect_b32 {s(sT1)}, {hex((32 * 12288 - 640 * 12288) & 0xFFFFFFFF)}, {s(sCW)}",
                f"s_cselect_b32 {s(sT2)}, {hex((64 - 1280) & 0xFFFFFFFF)}, 64",
                f"s_cselect_b32 {s(sKC)}, 0, {s(sKC)}",
                f"s_add_u32 {s(sWOFF)}, {s(sWOFF)}, {s(sT1)}",
                f"s_add_u32 {s(sX0)}, {s(sX0)}, {s(sT2)}",
                f"s_add_u32 {s(sX1)}, {s(sX1)}, {s(sT2)}",
                f"s_add_u32 {s(sXE)}, {s(sXE)}, {s(sT2)}"]
        vq.issue(("S", k), 5)
        return out

    KVPRE = [("K", 0), ("K", 1), ("V", 0), ("V", 1), ("K", 2), ("K", 3), ("V", 2), ("K", 4)]

    def qp_phase(role, vq):
        tiles = tilesX if role == "X" else tilesY
        ns = NSX if role == "X" else 3 - NSX
        if role == "Y":
            for k in range(2):
                for x in stage_dma(k, vq):
                    a(x)

        def reads(k, s2):
            st = (k % 3) * SS
            out = [f"ds_read_b128 {v(QB[s2], 4)}, {v(aXB[s2])} offset:{st}"]
            for i, Tt in enumerate(tiles):
                for jj in range(2):
                    out.append(f"ds_read_b64_tr_b16 {v(QA[s2] + 4 * i + 2 * jj, 2)}, {v(aW[Tt & 1, jj])} "
                               f"offset:{st + 16 * s2 * 384 + (Tt >> 1) * 128}")
            if s2 == 1 and ns:
                out.append(f"ds_read_b128 {v(QBE, 4)}, {v(aXe)} offset:{st}")
                for i in range(ns):
                    for jj in range(2):
                        out.append(f"ds_read_b64_tr_b16 {v(QAE + 4 * i + 2 * jj, 2)}, {v(aWe[i, jj])} offset:{st}")
            return out

        def mfmas(k, s2):
            out = []
            for i, Tt in enumerate(tiles):
                acc = v(QACC + 16 * i, 16)
                cin = "0" if (k == 0 and s2 == 0) else acc
                out.append(f"v_mfma_f32_32x32x16_bf16 {acc}, {v(QA[s2] + 4 * i, 4)}, {v(QB[s2], 4)}, {cin}")
            if s2 == 1:
                for i in range(ns):
                    acc = v(QSA + 4 * i, 4)
                    cin = "0" if k == 0 else acc
                    out.append(f"v_mfma_f32_16x16x32_bf16 {acc}, {v(QAE + 4 * i, 4)}, {v(QBE, 4)}, {cin}")
            return out

        for k in range(20):
            if role == "Y":
                a(f"s_waitcnt vmcnt({vq.wait_for({('S', k)})})")
            a("s_barrier")
            if k in (0, 1, 5, 10, 15):
                stamp(1 + (0, 1, 5, 10, 15).index(k))
            for x in reads(k, 0):
                a(x)
            dma = []
            if role == "Y" and k + 2 < 20:
                dma = stage_dma(k + 2, vq)
            if role == "X" and k < len(KVPRE):
                dma = kv_dma(*KVPRE[k])
                vq.issue(KVPRE[k], 3)
            if k > 0:
                m = mfmas(k - 1, 1)
                a(m[0])
                for x in dma:
                    a(x)
                for x in m[1:]:
                    a(x)
            else:
                for x in dma:
                    a(x)
            for x in reads(k, 1):
                a(x)
            for x in mfmas(k, 0):
                a(x)
            a("s_waitcnt lgkmcnt(0)")
        for x in mfmas(19, 1):
            a(x)
        i0 = 0 if role == "X" else NSX
        a(f"v_lshrrev_b32 {T[0]}, 4, {L}")
        a(f"v_lshl_add_u32 {T[0]}, {T[0]}, 3, {v(aQE)}")
        a(f"s_mul_i32 {s(sT0)}, {s(sW)}, 96")
        a(f"v_add_u32 {T[0]}, {s(sT0)}, {T[0]}")
        if role == "X":
            for i, Tt in enumerate(tiles):
                for e in range(8):
                    a(f"v_cvt_pk_bf16_f32 {v(XQ + 8 * Tt + e)}, {v(QACC + 16 * i + 2 * e)}, {v(QACC + 16 * i + 2 * e + 1)}")
        else:
            a(f"s_mul_i32 {s(sT0)}, {s(sW)}, {len(tilesY) * 2048}")
            a(f"s_add_u32 {s(sT0)}, {s(sT0)}, {STG}")
            a(f"s_cmp_eq_u32 {s(sW)}, 3")
            a(f"s_cselect_b32 {s(sT0)}, {QH3}, {s(sT0)}")
            a(f"v_add_u32 {T[1]}, {s(sT0)}, {v(aLin)}")
            for i, Tt in enumerate(tiles):
                for e in range(8):
                    a(f"v_cvt_pk_bf16_f32 {v(QA[0] + 8 * i + e)}, {v(QACC + 16 * i + 2 * e)}, {v(QACC + 16 * i + 2 * e + 1)}")
                for hf in range(2):
                    a(f"ds_write_b128 {T[1]}, {v(QA[0] + 8 * i + 4 * hf, 4)} offset:{(2 * i + hf) * 1024}")
        for i in range(ns):
            a(f"v_cvt_pk_bf16_f32 {v(QSA + 4 * i)}, {v(QSA + 4 * i)}, {v(QSA + 4 * i + 1)}")
            a(f"v_cvt_pk_bf16_f32 {v(QSA + 4 * i + 1)}, {v(QSA + 4 * i + 2)}, {v(QSA + 4 * i + 3)}")
            a(f"ds_write_b64 {T[0]}, {v(QSA + 4 * i, 2)} offset:{32 * (i0 + i)}")
        a("s_waitcnt lgkmcnt(0)")
        stamp(6)

    def softmax(S, n, P, st, waddr, aaddr, woff, aoff, small):
        M_, NM_, TH_, AL_ = st
        lab = a.newlabel("sm")
        out = []
        t = v(vt0)
        out.append(f"v_max3_f32 {t}, {v(S)}, {v(S + 1)}, {v(S + 2)}")
        i = 3
        while i + 1 < n:
            out.append(f"v_max3_f32 {t}, {t}, {v(S + i)}, {v(S + i + 1)}")
            i += 2
        out.append(f"v_max_f32 {t}, {t}, {v(S + n - 1)}")
        out.append(f"v_mov_b32 {v(AL_)}, 1.0")
        out.append(f"v_cmp_gt_f32 vcc, {t}, {v(TH_)}")
        out.append(f"s_cbranch_vccnz R_{lab}\nK_{lab}:")
        out.append(f"ds_write_b32 {v(aaddr)}, {v(AL_)} offset:{aoff}")
        for q in range(n // 4):
            for e in range(4):
                r = S + 4 * q + e
                out.append(f"v_fma_f32 {v(r)}, {v(r)}, {s(sC)}, {v(NM_)}")
            for e in range(4):
                r = S + 4 * q + e
                out.append(f"v_exp_f32 {v(r)}, {v(r)}")
            if q > 0:
                for e in range(2):
                    r = S + 4 * (q - 1) + 2 * e
                    out.append(f"v_cvt_pk_bf16_f32 {v(P + 2 * (q - 1) + e)}, {v(r)}, {v(r + 1)}")
            if q == 2:
                out.append(f"ds_write_b128 {v(waddr)}, {v(P, 4)} offset:{woff}")
        q = n // 4
        for e in range(2):
            r = S + 4 * (q - 1) + 2 * e
            out.append(f"v_cvt_pk_bf16_f32 {v(P + 2 * (q - 1) + e)}, {v(r)}, {v(r + 1)}")
        if n == 16:
            out.append(f"ds_write_b128 {v(waddr)}, {v(P + 4, 4)} offset:{woff + 1024}")
        else:
            out.append(f"ds_write_b128 {v(waddr)}, {v(P, 4)} offset:{woff}")
        t2 = v(vt1)
        rb = [f"R_{lab}:",
              f"v_mov_b32 {t2}, {t}",
              f"v_permlane32_swap_b32 {t}, {t2}",
              f"v_max_f32 {t}, {t}, {t2}"]
        if small:
            rb += [f"v_mov_b32 {t2}, {t}",
                   f"v_permlane16_swap_b32 {t}, {t2}",
                   f"v_max_f32 {t}, {t}, {t2}"]
        rb += [f"v_max_f32 {t}, {t}, {v(M_)}",
               f"v_sub_f32 {t2}, {v(M_)}, {t}",
               f"v_mul_f32 {t2}, {s(sC)}, {t2}",
               f"v_exp_f32 {v(AL_)}, {t2}",
               f"v_mov_b32 {v(M_)}, {t}",
               f"v_mul_f32 {v(NM_)}, {s(sNC)}, {t}",
               f"v_add_f32 {v(TH_)}, {s(sTC)}, {t}",
               f"s_branch K_{lab}"]
        rare_blocks.append(rb)
        return out

    def unit_sel(hA, dst):
        a(f"s_bitcmp1_b32 {s(sW)}, 0")
        a(f"s_cselect_b32 {s(dst)}, {(hA + 1) % 5}, {hA % 5}")
        a(f"s_mul_i32 {s(dst)}, {s(dst)}, {UNIT}")

    def att_x(vq):
        issued = [5]
        for t in range(9):
            need = {("K", 2 * t), ("K", 2 * t + 1), ("V", 2 * t - 2), ("V", 2 * t - 1)}
            if any(q in need for q in vq.q):
                a(f"s_waitcnt vmcnt({vq.wait_for(need)})")
            a("s_barrier")
            stamp(8 + 2 * t)
            if t == 8:
                break
            dma = []
            while issued[0] <= min(2 * t + 4, 15):
                dma += kv_dma("K", issued[0])
                vq.issue(("K", issued[0]), 3)
                issued[0] += 1
            if t == 0:
                a(f"s_mul_i32 {s(sT0)}, {s(sW)}, {len(tilesY) * 2048}")
                a(f"s_add_u32 {s(sT0)}, {s(sT0)}, {STG}")
                a(f"s_cmp_eq_u32 {s(sW)}, 3")
                a(f"s_cselect_b32 {s(sT0)}, {QH3}, {s(sT0)}")
                a(f"v_add_u32 {T[1]}, {s(sT0)}, {v(aLin)}")
                a(f"v_lshrrev_b32 {T[0]}, 4, {L}")
                a(f"v_lshl_add_u32 {T[0]}, {T[0]}, 4, {v(aQE)}")
                for i, Tt in enumerate(tilesY):
                    for hf in range(2):
                        a(f"ds_read_b128 {v(XQ + 8 * Tt + 4 * hf, 4)}, {T[1]} offset:{(2 * i + hf) * 1024}")
                for sp in range(6):
                    a(f"ds_read_b128 {v(XQE + 4 * sp, 4)}, {T[0]} offset:{64 * sp}")
                for r in (vM, vTH, vMe, vTHe):
                    a(f"v_mov_b32 {v(r)}, 0xff800000")
                a("s_waitcnt lgkmcnt(0)")
                if cfg.get("dbgq"):
                    srd(a, 52, sP + 24, sP + 25, 0x10000000)
                    a(f"s_lshl_b32 {s(sT0)}, s2, 1")
                    a(f"s_add_u32 {s(sT0)}, {s(sT0)}, {s(sRND)}")
                    a(f"s_lshl_b32 {s(sT0)}, {s(sT0)}, 2")
                    a(f"s_add_u32 {s(sT0)}, {s(sT0)}, {s(sW)}")
                    a(f"s_mul_i32 {s(sT0)}, {s(sT0)}, 12288")
                    a(f"s_add_u32 {s(sT0)}, {s(sT0)}, 0x4000000")
                    for fi in range(12):
                        a(f"buffer_store_dwordx4 {v(XQ + 4 * fi, 4)}, {v(aLin)}, s[52:55], {s(sT0)} offen")
                        a(f"s_add_u32 {s(sT0)}, {s(sT0)}, 1024")
                    a("s_waitcnt vmcnt(0)")
                    vq.q = []
            rd, mf = [], []
            for bk in range(2):
                u = ((2 * t + bk) % 5) * UNIT
                for sx in range(12):
                    n = 12 * bk + sx
                    f = XKF + 4 * (n % 8)
                    rd.append(f"ds_read_b128 {v(f, 4)}, {v(aM[sx & 3])} offset:{u + (sx >> 2) * 128}")
                    acc = v(XS[bk], 16)
                    mf.append(f"v_mfma_f32_32x32x16_bf16 {acc}, {v(f, 4)}, {v(XQ + 4 * sx, 4)}, {'0' if sx == 0 else acc}")
            AH = 6
            for x in rd[:AH]:
                a(x)
            seqA = []
            for n in range(14):
                seqA.append(mf[n])
                if n + AH < 24:
                    seqA.append(rd[n + AH])
                if n == 0:
                    seqA += dma
            for x in seqA:
                a(x)
            pb = PBUF[t & 1] - PR
            smA = softmax(XS[0], 16, XP[0], (vM, vNM, vTH, vAL), aPw, aAl, pb, (t & 1) * 1024, False)
            main = []
            for n in range(14, 24):
                item = mf[n]
                if n + AH < 24:
                    item += "\n" + rd[n + AH]
                main.append(item)
            for x in interleave(main, smA):
                a(x)
            for x in softmax(XS[1], 16, XP[1], (vM, vNM, vTH, vAL), aPw, aAl, pb + 2048, (t & 1) * 1024 + 128, False):
                a(x)
            lab = a.newlabel("xe")
            a(f"s_lshr_b32 {s(sT0)}, {s(sW)}, 1")
            a(f"s_cmp_lg_u32 {s(sT0)}, {t & 1}")
            a(f"s_cbranch_scc1 {lab}")
            unit_sel(2 * t, sT0)
            for p in range(2):
                a(f"v_add_u32 {v(cE[p])}, {s(sT0)}, {v(aE[p])}")
            rd, mf = [], []
            for sp in range(6):
                for kt in range(2):
                    n = 2 * sp + kt
                    f = XKF + 4 * (n % 8)
                    rd.append(f"ds_read_b128 {v(f, 4)}, {v(cE[sp & 1])} offset:{16 * kt * 384 + (sp >> 1) * 128}")
                    acc = v(XSE + 4 * kt, 4)
                    mf.append(f"v_mfma_f32_16x16x32_bf16 {acc}, {v(f, 4)}, {v(XQE + 4 * sp, 4)}, {'0' if sp == 0 else acc}")
            for x in rd[:AH]:
                a(x)
            for n in range(12):
                a(mf[n])
                if n + AH < 12:
                    a(rd[n + AH])
            a(f"s_lshl_b32 {s(sT0)}, {s(sW)}, 10")
            a(f"s_add_u32 {s(sT0)}, {s(sT0)}, {PE}")
            a(f"v_add_u32 {v(cE[2])}, {s(sT0)}, {v(aLin)}")
            a(f"s_lshl_b32 {s(sT0)}, {s(sW)}, 6")
            a(f"s_add_u32 {s(sT0)}, {s(sT0)}, {SMALL}")
            a(f"v_add_u32 {v(cE[3])}, {s(sT0)}, {v(aAe)}")
            for x in softmax(XSE, 8, XPE, (vMe, vNMe, vTHe, vALe), cE[2], cE[3], 0, ALPHAE - SMALL, True):
                a(x)
            if t >= 6:
                a(f"ds_write_b32 {v(cE[3])}, {v(vMe)} offset:{ME - SMALL}")
            a.label(lab)
            a("s_waitcnt lgkmcnt(0)")
            stamp(9 + 2 * t)
        a("s_barrier")
        stamp(26)
        a("s_barrier")
        stamp(27)
        a(f"s_mul_i32 {s(sT0)}, {s(sW)}, 3072")
        a(f"s_add_u32 {s(sT0)}, {s(sT0)}, {MERGE}")
        a(f"v_add_u32 {T[0]}, {s(sT0)}, {v(aLin)}")
        a(f"v_add_u32 {T[1]}, {SMALL}, {v(aAe)}")
        R = 128
        for wp in range(4):
            a(f"ds_read_b32 {v(R + 48 + wp)}, {T[1]} offset:{LE - SMALL + 64 * wp}")
        for i in range(3):
            for wp in range(4):
                a(f"ds_read_b128 {v(R + 16 * i + 4 * wp, 4)}, {T[0]} offset:{wp * 12288 + i * 1024}")
        a(f"v_add_f32 {v(R + 48)}, {v(R + 48)}, {v(R + 49)}")
        a(f"v_add_f32 {v(R + 50)}, {v(R + 50)}, {v(R + 51)}")
        a(f"v_add_f32 {v(R + 48)}, {v(R + 48)}, {v(R + 50)}")
        a(f"v_rcp_f32 {v(R + 48)}, {v(R + 48)}")
        a(f"v_lshlrev_b32 {T[2]}, 2, {v(aAe)}")
        a(f"v_lshrrev_b32 {T[3]}, 5, {L}")
        a(f"v_lshl_add_u32 {T[2]}, {T[3]}, 9, {T[2]}")
        a(f"v_bfe_u32 {T[3]}, {L}, 4, 1")
        a(f"v_lshl_add_u32 {T[2]}, {T[3]}, 3, {T[2]}")
        for i in range(3):
            b0 = R + 16 * i
            for e in range(4):
                a(f"v_add_f32 {v(b0 + e)}, {v(b0 + e)}, {v(b0 + 4 + e)}")
                a(f"v_add_f32 {v(b0 + 8 + e)}, {v(b0 + 8 + e)}, {v(b0 + 12 + e)}")
            for e in range(4):
                a(f"v_add_f32 {v(b0 + e)}, {v(b0 + e)}, {v(b0 + 8 + e)}")
            for e in range(4):
                a(f"v_mul_f32 {v(b0 + e)}, {v(b0 + e)}, {v(R + 48)}")
            a(f"v_cvt_pk_bf16_f32 {v(b0 + 4)}, {v(b0)}, {v(b0 + 1)}")
            a(f"v_cvt_pk_bf16_f32 {v(b0 + 5)}, {v(b0 + 2)}, {v(b0 + 3)}")
            a(f"s_mul_i32 {s(sT0)}, {s(sW)}, 3")
            a(f"s_add_u32 {s(sT0)}, {s(sT0)}, {i}")
            a(f"s_lshr_b32 {s(sT1)}, {s(sT0)}, 2")
            a(f"s_mul_i32 {s(sT1)}, {s(sT1)}, {36 * 4096}")
            a(f"s_and_b32 {s(sT0)}, {s(sT0)}, 3")
            a(f"s_lshl_b32 {s(sT0)}, {s(sT0)}, 10")
            a(f"s_add_u32 {s(sT0)}, {s(sT0)}, {s(sT1)}")
            a(f"s_add_u32 {s(sT0)}, {s(sT0)}, {s(sOE)}")
            a(f"buffer_store_dwordx2 {v(b0 + 4, 2)}, {T[2]}, {s(SWS, 4)}, {s(sT0)} offen{ONT}")
            vq.issue("st")
        a("s_barrier")

    def rescale_block(regs, al):
        lab = a.newlabel("rs")
        rb = [f"R_{lab}:", "s_nop 15"]
        for r in regs:
            rb.append(f"v_mul_f32 {v(r)}, {v(al)}, {v(r)}")
        rb += ["s_nop 1", f"s_branch K_{lab}"]
        rare_blocks.append(rb)
        return [f"v_cmp_neq_f32 vcc, 1.0, {v(al)}", f"s_cbranch_vccnz R_{lab}", f"K_{lab}:"]

    def att_y(vq):
        issued = [3]
        for t in range(9):
            need = {("V", 2 * t - 2), ("V", 2 * t - 1)}
            if any(q in need for q in vq.q):
                a(f"s_waitcnt vmcnt({vq.wait_for(need)})")
            a("s_barrier")
            stamp(8 + 2 * t)
            if t == 0:
                for r in list(range(YO, YO + 96)) + list(range(YOE, YOE + 48)) + [vLs, vLe]:
                    a(f"v_mov_b32 {v(r)}, 0")
                continue
            dma = []
            while issued[0] <= min(2 * t + 2, 15):
                dma += kv_dma("V", issued[0])
                vq.issue(("V", issued[0]), 3)
                issued[0] += 1
            pbuf = (t - 1) & 1
            pb = PBUF[pbuf] - PR
            a(f"ds_read_b32 {v(vAa)}, {v(aAl)} offset:{pbuf * 1024}")
            a(f"ds_read_b32 {v(vAb)}, {v(aAl)} offset:{pbuf * 1024 + 128}")
            for i in range(4):
                a(f"ds_read_b128 {v(YP + 4 * i, 4)}, {v(aPw)} offset:{pb + 1024 * i}")
            rd, mf = [], []
            for bk in range(2):
                u = ((2 * t - 2 + bk) % 5) * UNIT
                for s2 in range(2):
                    for Tt in range(6):
                        n = 12 * bk + 6 * s2 + Tt
                        f = YVF + 4 * (n % 8)
                        off = u + 16 * s2 * 384 + (Tt >> 1) * 128
                        rd.append("\n".join(
                            f"ds_read_b64_tr_b16 {v(f + 2 * jj, 2)}, {v(aM[2 * (Tt & 1) + jj])} offset:{off}"
                            for jj in range(2)))
                        acc = v(YO + 16 * Tt, 16)
                        mf.append(f"v_mfma_f32_32x32x16_bf16 {acc}, {v(f, 4)}, {v(YP + 8 * bk + 4 * s2, 4)}, {acc}")
            AH = 4
            for x in rd[:AH]:
                a(x)
            oregs = list(range(YO, YO + 96)) + [vLs]
            for x in rescale_block(oregs, vAa):
                a(x)
            for n in range(24):
                if n == 12:
                    for x in rescale_block(oregs, vAb):
                        a(x)
                a(mf[n])
                if n + AH < 24:
                    a(rd[n + AH])
                if n == 0:
                    for x in dma:
                        a(x)
                if 2 <= n % 12 < 10:
                    a(f"v_dot2c_f32_bf16 {v(vLs)}, {s(sONES)}, {v(YP + 8 * (n // 12) + n % 12 - 2)}")
            lab = a.newlabel("ye")
            a(f"s_lshr_b32 {s(sT0)}, {s(sW)}, 1")
            a(f"s_cmp_lg_u32 {s(sT0)}, {(t - 1) & 1}")
            a(f"s_cbranch_scc1 {lab}")
            unit_sel(2 * t - 2, sT0)
            for i in range(4):
                a(f"v_add_u32 {v(cE[i])}, {s(sT0)}, {v(aE[i])}")
            a(f"s_lshl_b32 {s(sT0)}, {s(sW)}, 10")
            a(f"s_add_u32 {s(sT0)}, {s(sT0)}, {PE}")
            a(f"v_add_u32 {T[0]}, {s(sT0)}, {v(aLin)}")
            a(f"s_lshl_b32 {s(sT0)}, {s(sW)}, 6")
            a(f"s_add_u32 {s(sT0)}, {s(sT0)}, {SMALL}")
            a(f"v_add_u32 {T[1]}, {s(sT0)}, {v(aAe)}")
            a(f"ds_read_b32 {v(vAeY)}, {T[1]} offset:{ALPHAE - SMALL}")
            a(f"ds_read_b128 {v(YPE, 4)}, {T[0]}")
            rd, mf = [], []
            for dt in range(12):
                f = YVF + 4 * (dt % 8)
                rd.append("\n".join(
                    f"ds_read_b64_tr_b16 {v(f + 2 * jj, 2)}, {v(cE[dt & 3])} offset:{16 * jj * 384 + (dt >> 2) * 128}"
                    for jj in range(2)))
                acc = v(YOE + 4 * dt, 4)
                mf.append(f"v_mfma_f32_16x16x32_bf16 {acc}, {v(f, 4)}, {v(YPE, 4)}, {acc}")
            AH = 6
            for x in rd[:AH]:
                a(x)
            for x in rescale_block(list(range(YOE, YOE + 48)) + [vLe], vAeY):
                a(x)
            for n in range(12):
                a(mf[n])
                if n + AH < 12:
                    a(rd[n + AH])
                if 2 <= n < 6:
                    a(f"v_dot2c_f32_bf16 {v(vLe)}, {s(sONES)}, {v(YPE + n - 2)}")
            a.label(lab)
            a("s_waitcnt lgkmcnt(0)")
            stamp(9 + 2 * t)
        a("s_barrier")
        stamp(26)
        a(f"v_add_u32 {T[1]}, {SMALL}, {v(aAe)}")
        a(f"s_lshl_b32 {s(sT0)}, {s(sW)}, 6")
        a(f"v_add_u32 {T[2]}, {s(sT0)}, {T[1]}")
        for wp in range(4):
            a(f"ds_read_b32 {v(YP + wp)}, {T[1]} offset:{ME - SMALL + 64 * wp}")
        a(f"ds_read_b32 {v(YP + 4)}, {T[2]} offset:{ME - SMALL}")
        a(f"v_mov_b32 {T[3]}, {v(vLe)}")
        a(f"v_permlane32_swap_b32 {v(vLe)}, {T[3]}")
        a(f"v_add_f32 {v(vLe)}, {v(vLe)}, {T[3]}")
        a(f"v_mov_b32 {T[3]}, {v(vLe)}")
        a(f"v_permlane16_swap_b32 {v(vLe)}, {T[3]}")
        a(f"v_add_f32 {v(vLe)}, {v(vLe)}, {T[3]}")
        a(f"v_max3_f32 {v(YP)}, {v(YP)}, {v(YP + 1)}, {v(YP + 2)}")
        a(f"v_max_f32 {v(YP)}, {v(YP)}, {v(YP + 3)}")
        a(f"v_sub_f32 {v(YP)}, {v(YP + 4)}, {v(YP)}")
        a(f"v_mul_f32 {v(YP)}, {s(sC)}, {v(YP)}")
        a(f"v_exp_f32 {v(YP)}, {v(YP)}")
        a(f"s_mul_i32 {s(sT0)}, {s(sW)}, 12288")
        a(f"s_add_u32 {s(sT0)}, {s(sT0)}, {MERGE}")
        a(f"v_add_u32 {T[0]}, {s(sT0)}, {v(aLin)}")
        a(f"v_mul_f32 {v(vLe)}, {v(YP)}, {v(vLe)}")
        a(f"ds_write_b32 {T[2]}, {v(vLe)} offset:{LE - SMALL}")
        for dt in range(12):
            for e in range(4):
                r = YOE + 4 * dt + e
                a(f"v_mul_f32 {v(r)}, {v(YP)}, {v(r)}")
            a(f"ds_write_b128 {T[0]}, {v(YOE + 4 * dt, 4)} offset:{1024 * dt}")
        a("s_waitcnt lgkmcnt(0)")
        a("s_barrier")
        stamp(27)
        a(f"v_mov_b32 {T[3]}, {v(vLs)}")
        a(f"v_permlane32_swap_b32 {v(vLs)}, {T[3]}")
        a(f"v_add_f32 {v(vLs)}, {v(vLs)}, {T[3]}")
        a(f"v_rcp_f32 {v(vLs)}, {v(vLs)}")
        for fi in range(12):
            b0 = YO + 8 * fi
            for e in range(8):
                a(f"v_mul_f32 {v(b0 + e)}, {v(vLs)}, {v(b0 + e)}")
            d = YVF + 4 * (fi % 8)
            for e in range(4):
                a(f"v_cvt_pk_bf16_f32 {v(d + e)}, {v(b0 + 2 * e)}, {v(b0 + 2 * e + 1)}")
            if fi % 4 == 0 and fi:
                a(f"s_add_u32 {s(sOM)}, {s(sOM)}, {36 * 4096}")
            a(f"buffer_store_dwordx4 {v(d, 4)}, {v(aLin)}, {s(SWS, 4)}, {s(sOM)} offen offset:{1024 * (fi % 4)}{ONT}")
            vq.issue("st")
        a("s_barrier")

    for role in ("X", "Y"):
        if role == "Y":
            a.label(f"{K}_ysetup")
        role_setup(role)
        a.label(f"{K}_task{role}")
        task_setup()
        stamp(0)
        stamp(32, True)
        vq = VMQ()
        qp_phase(role, vq)
        if role == "X":
            att_x(vq)
        else:
            att_y(vq)
        stamp(28)
        a("s_waitcnt vmcnt(0)")
        stamp(29)
        stamp(33, True)
        if cfg.get("stamp"):
            srd(a, 52, sP + 24, sP + 25, 0x10000000)
            a(f"s_lshl_b32 {s(sT0)}, s2, 1")
            a(f"s_add_u32 {s(sT0)}, {s(sT0)}, {s(sRND)}")
            a(f"s_lshl_b32 {s(sT0)}, {s(sT0)}, 3")
            a(f"s_add_u32 {s(sT0)}, {s(sT0)}, {s(sWV)}")
            a(f"s_lshl_b32 {s(sT0)}, {s(sT0)}, 8")
            a(f"s_add_u32 {s(sT0)}, {s(sT0)}, 0x4000000")
            a(f"v_lshlrev_b32 v254, 2, v0")
            a(f"buffer_store_dword v255, v254, s[52:55], {s(sT0)} offen")
            a("s_waitcnt vmcnt(0)")
        a(f"s_add_u32 {s(sRND)}, {s(sRND)}, 1")
        a(f"s_cmp_lt_u32 {s(sRND)}, 2")
        a(f"s_cbranch_scc1 {K}_task{role}")
        a("s_endpgm")
        for rb in rare_blocks:
            for x in rb:
                a(x)
        rare_blocks.clear()
    a.label(f"{K}_end")
    a("s_endpgm")


def gen_k2(a, cfg):
    NST = 4
    SSZ = 40960
    WOB = 0
    OB = 16384
    SWO, SO, SPT = 8, 12, 16
    sBLK, sS, sMT, sNT, sWV, sT0, sT1, sT2 = 20, 21, 22, 23, 24, 25, 26, 27
    sWOFF, sWOFF2, sOOFF, sMW, sMO, sIT, sPO = 28, 29, 30, 31, 32, 33, 34
    sKC, sCW, sCO = 35, 36, 37
    WNT = " nt" if cfg.get("wont", 1) else ""
    ONT = " nt" if cfg.get("olnt", 1) else ""
    PNT = " nt" if cfg.get("pnt", 0) else ""
    sP = 64
    L = "v0"
    T = [f"v{i}" for i in range(1, 8)]
    pWo, pO = 8, [9, 10, 11]
    aA = [12, 13]
    aB = 14
    aLin = 15
    ACC = 16
    FA = 64
    FB = 80
    K = "k2"
    a.label("oproj_kernel")
    a("s_cmp_ge_u32 s2, 240")
    a(f"s_cbranch_scc1 {K}_end")
    a(f"s_load_dwordx2 {s(sP, 2)}, s[0:1], 32")
    a(f"s_load_dwordx2 {s(sP + 2, 2)}, s[0:1], 72")
    a(f"s_load_dwordx2 {s(sP + 4, 2)}, s[0:1], 96")
    c = LC(a)
    c.shr(T[0], 6, "v0")
    a(f"v_readfirstlane_b32 {s(sWV)}, {T[0]}")
    c.and_("v0", 63, "v0")
    c.set_s(s(sWV), np.arange(8))
    a(f"""
    s_bfe_u32 {s(sBLK)}, s2, 0x10002
    s_and_b32 {s(sS)}, s2, 3
    s_lshr_b32 {s(sT0)}, s2, 3
    s_mul_i32 {s(sNT)}, {s(sT0)}, 43
    s_lshr_b32 {s(sNT)}, {s(sNT)}, 8
    s_mul_i32 {s(sT1)}, {s(sNT)}, 6
    s_sub_u32 {s(sMT)}, {s(sT0)}, {s(sT1)}
    s_lshl_b32 {s(sMW)}, {s(sWV)}, 11
    s_mul_i32 {s(sMO)}, {s(sWV)}, 3072
    s_add_u32 {s(sMO)}, {s(sMO)}, {OB}
    """)
    r_, c_, h_, G1_ = (LANE >> 2) & 3, LANE & 3, LANE >> 5, (LANE >> 4) & 1
    c.shr(T[0], 4, L)
    c.shl(T[1], 2, T[0])
    c.and_(T[2], 15, L)
    c.xor(T[1], T[1], T[2])
    c.mul24(T[0], 1280, T[0])
    c.lshl_add(v(pWo), T[1], 4, T[0])
    c.check(v(pWo), (LANE >> 4) * 1280 + (((LANE & 15) ^ ((LANE >> 4) << 2)) << 4))
    c.shl(v(aLin), 4, L)
    c.mov(T[0], s(sWV))
    c.mul24(T[0], 3072, T[0])
    for i in range(3):
        c.add(v(pO[i]), T[0], v(aLin))
    c.bfe(T[0], L, 2, 2)
    c.shr(T[1], 5, L)
    c.lshl_or(T[1], T[1], 3, T[0])
    c.mov(T[2], s(sWV))
    c.and_(T[2], 3, T[2])
    c.xor(T[2], T[0], T[2])
    c.bfe(T[3], L, 4, 1)
    c.lshl_or(T[3], T[2], 1, T[3])
    c.and_(T[4], 1, L)
    c.lshl_or(T[3], T[3], 1, T[4])
    c.bfe(T[4], L, 1, 1)
    c.shl(T[4], 3, T[4])
    c.lshl_add(T[3], T[3], 4, T[4])
    c.lshl_add(v(aA[0]), T[1], 8, T[3])
    c.add(v(aA[1]), 1024, v(aA[0]))
    for jj in range(2):
        rw = 8 * h_ + 4 * jj + r_
        ch = 4 * (WV & 3) + 2 * G1_ + (c_ & 1)
        c.check(v(aA[jj]), rw * 256 + ((ch ^ ((rw & 3) << 2)) << 4) + (c_ >> 1) * 8)
    c.mov(T[0], s(sWV))
    c.shr(T[0], 2, T[0])
    c.mul24(T[0], 3 * 4096, T[0])
    c.add(T[0], OB, T[0])
    c.add(v(aB), T[0], v(aLin))
    a("s_waitcnt lgkmcnt(0)")
    a(f"s_cmp_eq_u32 {s(sBLK)}, 0")
    a(f"s_cselect_b64 {s(sP, 2)}, {s(sP, 2)}, {s(sP + 2, 2)}")
    srd(a, SWO, sP, sP + 1, 6144 * 640 * 2)
    srd(a, SO, sP + 4, sP + 5, O_BYTES)
    a(f"s_add_u32 {s(sP + 4)}, {s(sP + 4)}, {PART_OFF}")
    a(f"s_addc_u32 {s(sP + 5)}, {s(sP + 5)}, 0")
    srd(a, SPT, sP + 4, sP + 5, PART_BYTES)
    a(f"""
    s_mul_i32 {s(sWOFF)}, {s(sS)}, 1536
    s_lshl_b32 {s(sT0)}, {s(sWV)}, 3
    s_add_u32 {s(sWOFF)}, {s(sWOFF)}, {s(sT0)}
    s_mul_i32 {s(sWOFF)}, {s(sWOFF)}, 1280
    s_lshl_b32 {s(sT0)}, {s(sNT)}, 8
    s_add_u32 {s(sWOFF)}, {s(sWOFF)}, {s(sT0)}
    s_add_u32 {s(sWOFF2)}, {s(sWOFF)}, {4 * 1280 - 1024}
    s_mul_i32 {s(sT0)}, {s(sBLK)}, 36
    s_mul_i32 {s(sT1)}, {s(sMT)}, 6
    s_add_u32 {s(sT0)}, {s(sT0)}, {s(sT1)}
    s_mul_i32 {s(sOOFF)}, {s(sBLK)}, 96
    s_mul_i32 {s(sT2)}, {s(sS)}, 24
    s_add_u32 {s(sOOFF)}, {s(sOOFF)}, {s(sT2)}
    s_mul_i32 {s(sOOFF)}, {s(sOOFF)}, 36
    s_add_u32 {s(sOOFF)}, {s(sOOFF)}, {s(sT1)}
    s_lshl_b32 {s(sOOFF)}, {s(sOOFF)}, 12
    s_mul_i32 {s(sT1)}, {s(sS)}, 72
    s_add_u32 {s(sT0)}, {s(sT0)}, {s(sT1)}
    s_lshr_b32 {s(sT1)}, {s(sWV)}, 2
    s_mul_i32 {s(sT1)}, {s(sT1)}, 3
    s_add_u32 {s(sT0)}, {s(sT0)}, {s(sT1)}
    s_mul_i32 {s(sT0)}, {s(sT0)}, 20
    s_lshl_b32 {s(sT1)}, {s(sNT)}, 2
    s_add_u32 {s(sT0)}, {s(sT0)}, {s(sT1)}
    s_and_b32 {s(sT1)}, {s(sWV)}, 3
    s_add_u32 {s(sT0)}, {s(sT0)}, {s(sT1)}
    s_lshl_b32 {s(sPO)}, {s(sT0)}, 12
    s_lshl_b32 {s(sKC)}, {s(sMT)}, 2
    s_mul_i32 {s(sT0)}, {s(sNT)}, 5
    s_add_u32 {s(sKC)}, {s(sKC)}, {s(sT0)}
    s_cmp_ge_u32 {s(sKC)}, 24
    s_cselect_b32 {s(sT0)}, 24, 0
    s_sub_u32 {s(sKC)}, {s(sKC)}, {s(sT0)}
    s_mul_i32 {s(sKC)}, {s(sKC)}, {cfg.get("rot", 1)}
    s_mov_b32 {s(sCW)}, {64 * 1280}
    s_mov_b32 {s(sCO)}, {36 * 4096}
    s_mul_i32 {s(sT0)}, {s(sKC)}, {64 * 1280}
    s_add_u32 {s(sWOFF)}, {s(sWOFF)}, {s(sT0)}
    s_add_u32 {s(sWOFF2)}, {s(sWOFF2)}, {s(sT0)}
    s_mul_i32 {s(sT0)}, {s(sKC)}, {36 * 4096}
    s_add_u32 {s(sOOFF)}, {s(sOOFF)}, {s(sT0)}
    """)

    def dma(st):
        base = st * SSZ
        out = [f"s_add_u32 m0, {s(sMW)}, {base}",
               f"s_add_u32 {s(sKC)}, {s(sKC)}, 1",
               f"buffer_load_dwordx4 {v(pWo)}, {s(SWO, 4)}, {s(sWOFF)} offen{WNT} lds",
               f"buffer_load_dwordx4 {v(pWo)}, {s(SWO, 4)}, {s(sWOFF2)} offen offset:1024{WNT} lds",
               f"s_add_u32 m0, {s(sMO)}, {base}",
               f"s_cmp_eq_u32 {s(sKC)}, 24"]
        for i in range(3):
            off = f" offset:{1024 * i}" if i else ""
            out.append(f"buffer_load_dwordx4 {v(pO[i])}, {s(SO, 4)}, {s(sOOFF)} offen{off}{ONT} lds")
        out += [f"s_cselect_b32 {s(sT0)}, {hex((64 * 1280 * -23) & 0xFFFFFFFF)}, {s(sCW)}",
                f"s_cselect_b32 {s(sT1)}, {hex((36 * 4096 * -23) & 0xFFFFFFFF)}, {s(sCO)}",
                f"s_cselect_b32 {s(sKC)}, 0, {s(sKC)}",
                f"s_add_u32 {s(sWOFF)}, {s(sWOFF)}, {s(sT0)}",
                f"s_add_u32 {s(sWOFF2)}, {s(sWOFF2)}, {s(sT0)}",
                f"s_add_u32 {s(sOOFF)}, {s(sOOFF)}, {s(sT1)}"]
        return out

    def stamp(i, real=False):
        if not cfg.get("stamp2"):
            return
        a(f"{'s_memrealtime' if real else 's_memtime'} s[90:91]")
        a("s_waitcnt lgkmcnt(0)")
        a(f"v_writelane_b32 v131, s90, {i}")

    NCH = 24
    stamp(0)
    stamp(32, True)
    TD = cfg.get("td", 0)
    tO, tW, tD = "v128", "v129", "v132"
    sTO, sTW = 38, 39
    if TD:
        a(f"""
        s_lshr_b32 {s(sT0)}, s2, 3
        s_mul_i32 {s(sT1)}, {s(sT0)}, 39
        v_add_u32 {tO}, {s(sT1)}, v0
        v_min_u32 {tO}, 1151, {tO}
        v_lshlrev_b32 {tO}, 7, {tO}
        v_cmp_gt_u32 vcc, 39, v0
        v_mov_b32 v2, 0x7fffffff
        v_cndmask_b32 {tO}, v2, {tO}, vcc
        s_mul_i32 {s(sT1)}, {s(sT0)}, 22
        v_add_u32 {tW}, {s(sT1)}, v0
        v_min_u32 {tW}, 639, {tW}
        v_lshlrev_b32 {tW}, 7, {tW}
        v_cmp_gt_u32 vcc, 22, v0
        v_cndmask_b32 {tW}, v2, {tW}, vcc
        s_mul_i32 {s(sTO)}, {s(sBLK)}, 96
        s_mul_i32 {s(sT1)}, {s(sS)}, 24
        s_add_u32 {s(sTO)}, {s(sTO)}, {s(sT1)}
        s_add_u32 {s(sTO)}, {s(sTO)}, {s(sWV)}
        s_mul_i32 {s(sTO)}, {s(sTO)}, {36 * 4096}
        s_mul_i32 {s(sTW)}, {s(sS)}, {1536 * 1280}
        s_mul_i32 {s(sT0)}, {s(sWV)}, {64 * 1280}
        s_add_u32 {s(sTW)}, {s(sTW)}, {s(sT0)}
        """)

    def touch():
        return [f"buffer_load_dword {tD}, {tO}, {s(SO, 4)}, {s(sTO)} offen{ONT}",
                f"buffer_load_dword {tD}, {tW}, {s(SWO, 4)}, {s(sTW)} offen{WNT}",
                f"s_add_u32 {s(sTO)}, {s(sTO)}, {8 * 36 * 4096}",
                f"s_add_u32 {s(sTW)}, {s(sTW)}, {8 * 64 * 1280}"]

    if TD:
        for x in touch():
            a(x)
    for st in range(NST - 1):
        for x in dma(st):
            a(x)
    aA2, aB2 = [T[0], T[1]], T[2]
    a(f"v_add_u32 {aA2[0]}, {2 * SSZ}, {v(aA[0])}")
    a(f"v_add_u32 {aA2[1]}, {2 * SSZ}, {v(aA[1])}")
    a(f"v_add_u32 {aB2}, {2 * SSZ}, {v(aB)}")

    def reads(ch, kk):
        st = ch % NST
        hi = st >= 2
        base = (st - 2 if hi else st) * SSZ
        A = aA2 if hi else [v(aA[0]), v(aA[1])]
        B = aB2 if hi else v(aB)
        out = [f"ds_read_b64_tr_b16 {v(FA + 4 * kk + 2 * jj, 2)}, {A[jj]} offset:{base + kk * 4096}" for jj in range(2)]
        for i in range(3):
            out.append(f"ds_read_b128 {v(FB + 12 * kk + 4 * i, 4)}, {B} offset:{base + i * 4096 + kk * 1024}")
        return out

    def mfmas(ch, kk):
        out = []
        for i in range(3):
            acc = v(ACC + 16 * i, 16)
            cin = "0" if (ch == 0 and kk == 0) else acc
            out.append(f"v_mfma_f32_32x32x16_bf16 {acc}, {v(FA + 4 * kk, 4)}, {v(FB + 12 * kk + 4 * i, 4)}, {cin}")
        return out

    extra_out = [0]
    for ch in range(NCH):
        inflight = min(NST - 2, NCH - 1 - ch)
        ex = 2 if (TD and ch in (TD + 1, TD + 2, TD + 3, TD + 9, TD + 10, TD + 11)) else 0
        a(f"s_waitcnt vmcnt({5 * inflight + ex})")
        a("s_barrier")
        stamp(1 + ch)
        for x in reads(ch, 0):
            a(x)
        d = dma((ch + NST - 1) % NST) if ch + NST - 1 < NCH else []
        if TD and ch in (TD, TD + 8):
            d = d + touch()
            extra_out[0] = 2
        if ch > 0:
            m = mfmas(ch - 1, 3)
            a(m[0])
            for x in reads(ch, 1):
                a(x)
            a(m[1])
            for x in d:
                a(x)
            a(m[2])
        else:
            for x in reads(ch, 1) + d:
                a(x)
        for kk in range(3):
            m = mfmas(ch, kk)
            a(m[0])
            if kk + 2 < 4:
                for x in reads(ch, kk + 2):
                    a(x)
            a(m[1])
            a(m[2])
        a("s_waitcnt lgkmcnt(0)")
    for x in mfmas(NCH - 1, 3):
        a(x)
    for i in range(3):
        for r4 in range(4):
            a(f"buffer_store_dwordx4 {v(ACC + 16 * i + 4 * r4, 4)}, {v(aLin)}, {s(SPT, 4)}, {s(sPO)} offen offset:{1024 * r4}{PNT}")
        a(f"s_add_u32 {s(sPO)}, {s(sPO)}, {20 * 4096}")
    if cfg.get("stamp2"):
        stamp(25)
        a("s_waitcnt vmcnt(0)")
        stamp(26)
        stamp(33, True)
        srd(a, 52, sP + 4, sP + 5, 0x8000000)
        a(f"s_lshl_b32 {s(sT0)}, s2, 3")
        a(f"s_add_u32 {s(sT0)}, {s(sT0)}, {s(sWV)}")
        a(f"s_lshl_b32 {s(sT0)}, {s(sT0)}, 8")
        a(f"s_add_u32 {s(sT0)}, {s(sT0)}, {0x4000000 - PART_OFF}")
        a(f"v_lshlrev_b32 v130, 2, v0")
        a(f"buffer_store_dword v131, v130, s[52:55], {s(sT0)} offen")
    a.label(f"{K}_end")
    a("s_endpgm")


def gen_k3(a, cfg):
    SPT, SOUT = 8, 12
    sP = 64
    K = "k3"
    PLNT = " nt" if cfg.get("plnt", 0) else ""
    a.label("reduce_kernel")
    a("s_cmp_ge_u32 s2, 360")
    a(f"s_cbranch_scc1 {K}_end")
    a(f"s_load_dwordx2 {s(sP, 2)}, s[0:1], 80")
    a(f"s_load_dwordx2 {s(sP + 2, 2)}, s[0:1], 96")
    a("""
    v_lshrrev_b32 v1, 6, v0
    v_readfirstlane_b32 s20, v1
    v_and_b32 v0, 63, v0
    s_lshl_b32 s21, s2, 2
    s_add_u32 s21, s21, s20
    """)
    a("""
    s_mul_i32 s22, s21, 3277
    s_lshr_b32 s22, s22, 16
    s_mul_i32 s23, s22, 20
    s_sub_u32 s23, s21, s23
    s_cmp_ge_u32 s22, 36
    s_cselect_b32 s24, 1, 0
    s_mul_i32 s25, s24, 36
    s_sub_u32 s25, s22, s25
    s_lshl_b32 s26, s21, 12
    v_lshlrev_b32 v2, 4, v0
    """)
    a("""
    s_mul_i32 s27, s25, 81920
    s_mul_i32 s28, s24, 1280
    s_add_u32 s27, s27, s28
    s_lshl_b32 s28, s23, 6
    s_add_u32 s27, s27, s28
    v_and_b32 v3, 31, v0
    v_mul_u32_u24 v3, 2560, v3
    v_lshrrev_b32 v4, 5, v0
    v_lshl_add_u32 v3, v4, 4, v3
    s_waitcnt lgkmcnt(0)
    """)
    srd(a, SOUT, sP, sP + 1, 8 * 144 * 1280 * 2)
    a(f"s_add_u32 {s(sP + 2)}, {s(sP + 2)}, {PART_OFF}")
    a(f"s_addc_u32 {s(sP + 3)}, {s(sP + 3)}, 0")
    srd(a, SPT, sP + 2, sP + 3, PART_BYTES)
    if cfg.get("pb16", 1):
        a("s_lshr_b32 s26, s26, 1")
        for p in range(4):
            for hf in range(2):
                a(f"buffer_load_dwordx4 {v(40 + 8 * p + 4 * hf, 4)}, v2, {s(SPT, 4)}, s26 offen offset:{1024 * hf}{PLNT}")
            a(f"s_add_u32 s26, s26, {72 * 20 * 2048}")
        for p in range(4):
            a(f"s_waitcnt vmcnt({6 - 2 * p})")
            for e in range(8):
                src = v(40 + 8 * p + e)
                if p == 0:
                    a(f"v_lshlrev_b32 {v(8 + 2 * e)}, 16, {src}")
                    a(f"v_and_b32 {v(8 + 2 * e + 1)}, 0xffff0000, {src}")
                else:
                    a(f"v_lshlrev_b32 v5, 16, {src}")
                    a(f"v_and_b32 v6, 0xffff0000, {src}")
                    a(f"v_add_f32 {v(8 + 2 * e)}, {v(8 + 2 * e)}, v5")
                    a(f"v_add_f32 {v(8 + 2 * e + 1)}, {v(8 + 2 * e + 1)}, v6")
    else:
        for p in range(4):
            for r4 in range(4):
                a(f"buffer_load_dwordx4 {v(8 + 16 * p + 4 * r4, 4)}, v2, {s(SPT, 4)}, s26 offen offset:{1024 * r4}{PLNT}")
            a(f"s_add_u32 s26, s26, {72 * 20 * 4096}")
        a("s_waitcnt vmcnt(8)")
        for e in range(16):
            a(f"v_add_f32 {v(8 + e)}, {v(8 + e)}, {v(24 + e)}")
        a("s_waitcnt vmcnt(0)")
        for e in range(16):
            a(f"v_add_f32 {v(40 + e)}, {v(40 + e)}, {v(56 + e)}")
        for e in range(16):
            a(f"v_add_f32 {v(8 + e)}, {v(8 + e)}, {v(40 + e)}")
    for e in range(8):
        a(f"v_cvt_pk_bf16_f32 {v(24 + e)}, {v(8 + 2 * e)}, {v(8 + 2 * e + 1)}")
    a(f"buffer_store_dwordx4 v[24:27], v3, {s(SOUT, 4)}, s27 offen")
    a(f"buffer_store_dwordx4 v[28:31], v3, {s(SOUT, 4)}, s27 offen offset:32")
    a.label(f"{K}_end")
    a("s_endpgm")


def descriptor(name, nv, ns=102):
    acc = (nv + 3) // 4 * 4
    return f""".p2align 6
.amdhsa_kernel {name}
  .amdhsa_next_free_vgpr {nv}
  .amdhsa_next_free_sgpr {ns}
  .amdhsa_accum_offset {acc}
  .amdhsa_group_segment_fixed_size 0
  .amdhsa_kernarg_size 104
  .amdhsa_user_sgpr_count 2
  .amdhsa_user_sgpr_kernarg_segment_ptr 1
  .amdhsa_system_sgpr_workgroup_id_x 1
.end_amdhsa_kernel
"""


def build_fused(cfg):
    import kf
    name = NAME + "_kernel"
    cfg["kname"] = name
    head = [
        "; Generated by gen/gen.py. Kernarg: 10 inputs (A_x,A_k,A_v,A_wq,A_wo,B_x,B_k,B_v,B_wq,B_wo), out, debug, ws",
        "; @launch grid=(256,1,1) block=(512,1,1) lds=163840",
        '.amdgcn_target "amdgcn-amd-amdhsa--gfx950"',
        ".text",
    ]
    a = Asm()
    a.uid = 1000
    kf.gen_fused(a, cfg)
    a.insert_lgkm_waits()
    a.insert_nops()
    body = f".globl {name}\n.p2align 8\n.type {name},@function\n" + a.text()
    return "\n".join(head) + "\n" + body + '.section .rodata,"a"\n' + descriptor(name, 256)


def build(cfg):
    if cfg.get("v", 5) == 5:
        return build_fused(cfg)
    head = [
        "; Generated by gen/gen.py. Kernarg: 10 inputs (A_x,A_k,A_v,A_wq,A_wo,B_x,B_k,B_v,B_wq,B_wo), out, debug, ws",
        f"; @launch kernel=att_kernel grid=(256,1,1) block=(512,1,1) lds={LDS_K1}",
        "; @launch kernel=oproj_kernel grid=(240,1,1) block=(512,1,1) lds=163840",
        "; @launch kernel=reduce_kernel grid=(360,1,1) block=(256,1,1) lds=0",
        '.amdgcn_target "amdgcn-amd-amdhsa--gfx950"',
        ".text",
    ]
    if cfg.get("only") == "k2":
        head = [head[0], head[2], head[2]] + head[4:]
    body = []
    import k1v2, k1v3, k1v4, k2v2, kf
    cfg.setdefault("kname", "att_kernel")
    for name, fn in (("att_kernel", {1: gen_k1, 2: k1v2.gen_k1, 3: k1v3.gen_k1, 4: k1v4.gen_k1, 5: kf.gen_fused}[cfg.get("v", 5)]), ("oproj_kernel", k2v2.gen_k2 if cfg.get("v2", 2) == 2 else gen_k2), ("reduce_kernel", gen_k3)):
        a = Asm()
        a.uid = 1000 * (len(body) + 1)
        fn(a, cfg)
        a.insert_lgkm_waits()
        a.insert_nops()
        body.append(f".globl {name}\n.p2align 8\n.type {name},@function\n" + a.text())
    tail = ['.section .rodata,"a"\n', descriptor("att_kernel", 256), descriptor("oproj_kernel", 208),
            descriptor("reduce_kernel", 72)]
    return "\n".join(head) + "\n" + "".join(body) + "".join(tail)


if __name__ == "__main__":
    cfg = {}
    out = sys.argv[1] if len(sys.argv) > 1 else f"cdna_kernels/{NAME}.s"
    for kv in sys.argv[2:]:
        k, val = kv.split("=")
        cfg[k] = int(val) if val.lstrip("-").isdigit() else val
    open(out, "w").write(build(cfg))
    print("wrote", out)
```
